```python
import torch

def _softmax(x, axis=-1):
    return torch.softmax(x, dim=axis)
def _gelu(x):
    return torch.nn.functional.gelu(x, approximate="tanh")
def _silu(x):
    return torch.nn.functional.silu(x)
def _sigmoid(x):
    return torch.sigmoid(x)
def _layernorm(x, axis=-1, eps=1e-5):
    m = x.mean(dim=axis, keepdim=True)
    v = x.var(dim=axis, keepdim=True, unbiased=False)
    return (x - m) / torch.sqrt(v + eps)
def _scatter_add(tgt, idx, src, axis=0):
    return tgt.clone().index_add_(axis, idx, src)
def _segment_sum(src, seg, n):
    out = torch.zeros((n,) + src.shape[1:], dtype=src.dtype)
    return out.index_add_(0, seg, src)
def _pad(x, pw):
    flat = tuple(v for pair in reversed(pw) for v in pair)
    return torch.nn.functional.pad(x, flat)

kernel_name = 'standalone__glu_gated_geglu__sampling'

def setup_inputs():

    _w = (lambda a: (lambda t: t.to(torch.bfloat16) if t.is_floating_point() else t)(torch.as_tensor(a)))
    B, S, Dm, Df = 8, 8, 1024, 3584
    return {
        "x": _w((lambda *s: torch.randn(*s, dtype=torch.bfloat16) * 0.05)(B, S, Dm)),
        "w_gate": _w((lambda *s: torch.randn(*s, dtype=torch.bfloat16) * 0.05)(Dm, Df) * (Dm ** -0.5)),
        "w_up": _w((lambda *s: torch.randn(*s, dtype=torch.bfloat16) * 0.05)(Dm, Df) * (Dm ** -0.5)),
        "w_down": _w((lambda *s: torch.randn(*s, dtype=torch.bfloat16) * 0.05)(Df, Dm) * (Df ** -0.5)),
    }

def reference(x, w_gate, w_up, w_down):
    g = torch.einsum("bsd,df->bsf", x, w_gate)
    u = torch.einsum("bsd,df->bsf", x, w_up)
    h = _gelu(g) * u
    return torch.einsum("bsf,fd->bsd", h, w_down)
```

```python
import sys
sys.path.insert(0, "bench")
from asmlib import *

WB = 7340032
WS_E = 0
WS_FL = 4096
WS_H = 1 << 20
WS_A = 2 << 20
WS_C = 16 << 20
L_W, L_X, L_D = 0, 65536, 98304
LDS = 98304 + 28672
TB = 12
TM = (1 << TB) - 1
SPIN = 30000

def gen(name=MAIN, ntw=True, ntd=True, stA="sc1", stH="sc1", stamps=False, ldA="sc1", ldH="sc1"):
    k = K(name, 256, 256, LDS, vgpr=240, sgpr=96)
    st = (lambda i: k.stamp(i)) if stamps else (lambda i: None)
    NTW = " nt" if ntw else ""
    NTD = " nt" if ntd else ""
    m = lambda s: (" " + s) if s else ""
    sX, sG, sU, sD, sO, sW = "s[16:19]", "s[20:23]", "s[24:27]", "s[28:31]", "s[32:35]", "s[36:39]"
    sw = "s63"; sg = "s40"; sr = "s41"; skq = "s42"; sC = "s43"; sn64 = "s44"; skh = "s45"
    sT = "s46"; sF = "s47"; sE = "s48"; sit = "s49"; t0, t1, t2, t3 = "s50", "s51", "s52", "s53"
    sAst = ["s54", "s55", "s56"]; sAld = "s57"; sHld = "s58"; sCst = "s59"; sCld = "s60"; sNM = "s61"
    vL = "v1"; vWs = "v2"; vXs = ["v3", "v4"]; vDs = "v5"; vTrW = "v6"
    vXr = [[f"v{8+2*i+p}" for p in range(2)] for i in range(4)]
    vTrD = [f"v{16+i}" for i in range(4)]
    vA = "v20"; vHs = "v21"; vHl = "v22"; vCs = "v23"; vCl = "v24"; vO = "v25"; vFl = "v26"; vE = "v27"
    vt = [f"v{28+i}" for i in range(12)]
    FLG = 40
    ONES = 44
    G = 48
    ACC = 64; XF = 96; WF = 112; PA = 96; WD = 128; HF = 96; ACC2 = 64; PC = 96
    r4 = lambda b: f"v[{b}:{b+3}]"
    r2 = lambda b: f"v[{b}:{b+1}]"

    k(f"""s_cmp_ge_u32 s2, 256
    s_cbranch_scc1 L_end
    s_load_dwordx8 s[4:11], s[0:1], 0
    s_load_dwordx2 s[14:15], s[0:1], 48
    s_load_dwordx2 s[12:13], s[0:1], 32
    v_lshrrev_b32 {vt[0]}, 6, v0
    v_and_b32 {vL}, 63, v0
    s_and_b32 {sg}, s2, 7
    v_readfirstlane_b32 {sw}, {vt[0]}
    s_lshr_b32 {sr}, s2, 3
    s_and_b32 {skq}, {sr}, 3
    s_lshr_b32 {sC}, {sr}, 2
    s_mul_i32 {t0}, {sg}, 7
    s_add_u32 {sC}, {sC}, {t0}
    s_and_b32 {sn64}, {sr}, 15
    s_lshr_b32 {skh}, {sr}, 4""")
    st(0)
    k(f"""v_lshrrev_b32 {vt[0]}, 3, {vL}
    v_bfe_u32 {vt[1]}, {vL}, 1, 2
    v_bfe_u32 {vt[2]}, {vL}, 4, 1
    s_and_b32 {t0}, {sw}, 1
    s_lshl_b32 {t0}, {t0}, 1
    v_or_b32 {vt[2]}, {t0}, {vt[2]}
    v_xor_b32 {vt[1]}, {vt[1]}, {vt[2]}
    v_lshlrev_b32 {vt[1]}, 5, {vt[1]}
    v_and_b32 {vt[2]}, 1, {vL}
    v_lshl_or_b32 {vt[1]}, {vt[2]}, 4, {vt[1]}
    v_mul_u32_u24 {vWs}, 7168, {vt[0]}
    v_add_u32 {vWs}, {vWs}, {vt[1]}
    v_lshlrev_b32 {vDs}, 11, {vt[0]}
    v_add_u32 {vDs}, {vDs}, {vt[1]}
    s_lshl_b32 {t0}, {skq}, 8
    s_lshl_b32 {t1}, {sw}, 3
    s_add_u32 {t0}, {t0}, {t1}
    s_mul_i32 {t0}, {t0}, 7168
    s_lshl_b32 {t2}, {sC}, 7
    s_add_u32 {t0}, {t0}, {t2}
    v_add_u32 {vWs}, {t0}, {vWs}
    s_mul_i32 {t0}, {sg}, 448
    s_mul_i32 {t2}, {skh}, 224
    s_add_u32 {t0}, {t0}, {t2}
    s_add_u32 {t0}, {t0}, {t1}
    s_lshl_b32 {t0}, {t0}, 11
    s_lshl_b32 {t2}, {sn64}, 7
    s_add_u32 {t0}, {t0}, {t2}
    v_add_u32 {vDs}, {t0}, {vDs}""")
    k(f"""v_lshrrev_b32 {vt[1]}, 4, {vL}
    v_and_b32 {vt[2]}, 7, {vL}
    v_xor_b32 {vt[1]}, {vt[1]}, {vt[2]}
    v_lshlrev_b32 {vt[1]}, 4, {vt[1]}
    v_lshl_or_b32 {vXs[0]}, {vt[0]}, 11, {vt[1]}
    s_lshl_b32 {t0}, {sw}, 15
    s_lshl_b32 {t2}, {skq}, 9
    s_add_u32 {t0}, {t0}, {t2}
    v_add_u32 {vXs[0]}, {t0}, {vXs[0]}
    v_xor_b32 {vXs[1]}, 64, {vXs[0]}
    v_add_u32 {vXs[1]}, 0x4000, {vXs[1]}""")
    k(f"""s_mul_i32 {t0}, {sg}, 14
    s_lshr_b32 {t1}, {sr}, 2
    s_lshl_b32 {t1}, {t1}, 1
    s_add_u32 {t0}, {t0}, {t1}
    s_lshr_b32 {t1}, {sw}, 1
    s_add_u32 {t0}, {t0}, {t1}
    s_lshl_b32 {t0}, {t0}, 2
    s_add_u32 {t0}, {t0}, {skq}
    s_lshl_b32 {t0}, {t0}, 10
    s_and_b32 {t1}, {sw}, 1
    s_lshl_b32 {t1}, {t1}, 9
    s_add_u32 {t0}, {t0}, {t1}
    s_add_u32 {t0}, {t0}, {WS_H}
    v_and_b32 {vt[1]}, 15, {vL}
    v_lshlrev_b32 {vt[1]}, 4, {vt[1]}
    v_lshrrev_b32 {vt[2]}, 5, {vL}
    v_lshl_or_b32 {vHs}, {vt[2]}, 8, {vt[1]}
    v_add_u32 {vHs}, {t0}, {vHs}
    v_mov_b32 v{ONES}, -1
    v_mov_b32 v{ONES+1}, -1
    v_mov_b32 v{ONES+2}, -1
    v_mov_b32 v{ONES+3}, -1
    v_mov_b32 {vE}, 0""")
    k("s_waitcnt lgkmcnt(0)")
    for i, (d, src, sz) in enumerate([(20, 6, WB), (24, 8, WB), (36, 14, 1 << 28), (16, 4, 131072), (28, 10, WB), (32, 12, 131072)]):
        k(f"s_mov_b32 s{d}, s{src}\ns_mov_b32 s{d+1}, s{src+1}\ns_mov_b32 s{d+2}, {sz}\ns_mov_b32 s{d+3}, 0x00020000")
    k(f"s_cmp_ge_u32 {sr}, 28\ns_cbranch_scc1 L_spare")
    ops = []
    def vm(tag, text):
        ops.append(tag); k(text)
    def wait(tag, extra=""):
        idx = max(i for i, t in enumerate(ops) if t == tag)
        k(f"s_waitcnt vmcnt({len(ops)-1-idx}){extra}")
    def dmaW(s):
        for mat in range(2):
            k(f"s_mov_b32 m0, {t1}\ns_add_u32 {t1}, {t1}, 4096")
            vm(f"W{s}", f"buffer_load_dwordx4 {vWs}, {[sG,sU][mat]}, {t0} offen{NTW} lds")
        k(f"s_add_u32 {t0}, {t0}, {32*7168}")
    def dmaX(j):
        for n in range(2):
            k(f"s_mov_b32 m0, {t2}\ns_add_u32 {t2}, {t2}, {1024 if n == 0 else 8192-1024-128}")
            vm(f"X{j}", f"buffer_load_dwordx4 {vXs[n]}, {sX}, 0 offen offset:{128*j} lds")
    def dmaD():
        k(f"s_lshl_b32 {t1}, {sw}, 10\ns_add_u32 {t1}, {t1}, {L_D}\ns_mov_b32 {t0}, 0")
        for s in range(7):
            k(f"s_mov_b32 m0, {t1}\ns_add_u32 {t1}, {t1}, 4096")
            vm("D", f"buffer_load_dwordx4 {vDs}, {sD}, {t0} offen{NTD} lds")
            if s < 6: k(f"s_add_u32 {t0}, {t0}, {32*2048}")
    k(f"s_mov_b32 {t0}, 0\ns_lshl_b32 {t1}, {sw}, 10\ns_lshl_b32 {t2}, {sw}, 11\ns_add_u32 {t2}, {t2}, {L_X}")
    dmaW(0)
    k("s_mov_b64 exec, 0x0000ffff0000ffff" if False else "s_mov_b32 exec_lo, 0xffff\ns_mov_b32 exec_hi, 0xffff")
    vm("clr", f"buffer_store_dwordx4 {r4(ONES)}, {vHs}, {sW}, 0 offen sc1")
    k("s_mov_b64 exec, -1")
    vm("E", f"buffer_load_dword {vE}, {vE}, {sW}, 0 offen sc1")
    dmaX(0); dmaW(1); dmaX(1); dmaW(2); dmaX(2); dmaW(3); dmaX(3)
    for s in range(4, 8): dmaW(s)
    dmaD()
    def common_addr():
        k(f"""v_lshrrev_b32 {vt[0]}, 4, {vL}
        v_bfe_u32 {vt[1]}, {vL}, 2, 2
        v_lshl_or_b32 {vt[1]}, {vt[0]}, 3, {vt[1]}
        v_lshlrev_b32 {vt[1]}, 7, {vt[1]}
        v_and_b32 {vt[2]}, 3, {vL}
        v_lshl_or_b32 {vt[1]}, {vt[2]}, 3, {vt[1]}
        v_bfe_u32 {vt[2]}, {vL}, 3, 2""")
        k(f"v_xor_b32 {vt[3]}, {sw}, {vt[2]}\nv_lshl_or_b32 {vTrW}, {vt[3]}, 5, {vt[1]}")
        k(f"v_add_u32 {vt[1]}, {L_D}, {vt[1]}")
        for nt in range(4):
            k(f"v_xor_b32 {vt[3]}, {nt}, {vt[2]}\nv_lshl_or_b32 {vTrD[nt]}, {vt[3]}, 5, {vt[1]}")
        k(f"""v_lshlrev_b32 {vHl}, 4, {vL}
        s_mul_i32 {t0}, {sg}, 14
        s_mul_i32 {t1}, {skh}, 7
        s_add_u32 {t0}, {t0}, {t1}
        s_lshl_b32 {t0}, {t0}, 2
        s_add_u32 {t0}, {t0}, {sw}
        s_lshl_b32 {t0}, {t0}, 10
        s_add_u32 {sHld}, {t0}, {WS_H}""")
        k(f"""v_bfe_u32 {vt[1]}, {vL}, 2, 2
        v_lshlrev_b32 {vt[1]}, 14, {vt[1]}
        v_lshl_or_b32 {vt[1]}, {vt[0]}, 6, {vt[1]}
        v_and_b32 {vt[2]}, 3, {vL}
        v_lshl_or_b32 {vCs}, {vt[2]}, 4, {vt[1]}
        s_lshl_b32 {t0}, {sg}, 1
        s_add_u32 {t0}, {t0}, {skh}
        s_lshl_b32 {t1}, {sn64}, 4
        s_lshl_b32 {t2}, {sw}, 2
        s_add_u32 {t2}, {t2}, {t1}
        s_lshl_b32 {t2}, {t2}, 4
        s_add_u32 {t2}, {t2}, {t0}
        s_lshl_b32 {t2}, {t2}, 10
        s_add_u32 {sCst}, {t2}, {WS_C}""")
        k(f"""s_add_u32 {t1}, {t1}, {t0}
        s_lshl_b32 {t1}, {t1}, 14
        s_lshl_b32 {t2}, {sw}, 8
        s_add_u32 {t1}, {t1}, {t2}
        s_add_u32 {sCld}, {t1}, {WS_C}
        v_and_b32 {vt[1]}, 15, {vL}
        v_lshlrev_b32 {vt[1]}, 4, {vt[1]}
        v_lshl_or_b32 {vCl}, {vt[0]}, 10, {vt[1]}""")
        k(f"""v_bfe_u32 {vt[1]}, {vL}, 2, 2
        v_lshlrev_b32 {vt[1]}, 3, {vt[1]}
        v_lshl_or_b32 {vt[1]}, {vt[0]}, 1, {vt[1]}
        v_lshl_or_b32 {vO}, {vt[2]}, 11, {vt[1]}
        s_lshl_b32 {t0}, {t0}, 13
        s_lshl_b32 {t1}, {sn64}, 7
        s_add_u32 {t0}, {t0}, {t1}
        s_lshl_b32 {t1}, {sw}, 5
        s_add_u32 {t0}, {t0}, {t1}
        v_add_u32 {vO}, {t0}, {vO}""")
        k(f"""v_and_b32 {vt[1]}, 31, {vL}
        v_lshlrev_b32 {vFl}, 4, {vt[1]}
        s_lshl_b32 {t0}, {sg}, 9
        s_add_u32 {t0}, {t0}, {WS_FL}
        v_add_u32 {vFl}, {t0}, {vFl}
        s_mov_b32 {sNM}, {(~TM) & 0xffffffff}""")
    def epoch_and_flag():
        k(f"""v_readfirstlane_b32 {sE}, {vE}
        s_lshl_b32 {t0}, {sg}, 5
        s_add_u32 {t0}, {t0}, {sr}
        s_lshl_b32 {t0}, {t0}, 4
        s_lshl_b32 {t1}, {sw}, 2
        s_add_u32 {t0}, {t0}, {t1}
        s_add_u32 {t0}, {t0}, {WS_FL}
        s_add_u32 {sF}, {sE}, 0x9e3779b9
        s_and_b32 {sT}, {sF}, {TM}
        v_mov_b32 {vt[4]}, {t0}
        v_mov_b32 {vt[5]}, {sF}
        s_mov_b64 exec, 1""")
        vm("flag", f"buffer_store_dword {vt[5]}, {vt[4]}, {sW}, 0 offen sc1")
        k("s_mov_b64 exec, -1")
    common_addr()
    k(f"""v_lshrrev_b32 {vt[0]}, 4, {vL}
    v_bfe_u32 {vt[1]}, {vL}, 1, 3
    v_xor_b32 {vt[0]}, {vt[0]}, {vt[1]}
    v_lshlrev_b32 {vt[0]}, 4, {vt[0]}
    v_and_b32 {vt[1]}, 15, {vL}
    v_lshl_or_b32 {vt[0]}, {vt[1]}, 7, {vt[0]}""")
    for i in range(4):
        k(f"""s_xor_b32 {t0}, {skq}, {i}
        s_lshl_b32 {t0}, {t0}, 11
        s_add_u32 {t0}, {t0}, {L_X}
        v_add_u32 {vXr[i][0]}, {t0}, {vt[0]}
        v_xor_b32 {vXr[i][1]}, 64, {vXr[i][0]}""")
    k(f"""v_lshlrev_b32 {vA}, 4, {vL}
    s_lshl_b32 {t0}, {sw}, 11
    v_add_u32 {vA}, {t0}, {vA}
    s_lshl_b32 {t0}, {sC}, 2""")
    for i in range(1, 4):
        k(f"""s_xor_b32 {t1}, {skq}, {i}
        s_add_u32 {t1}, {t1}, {t0}
        s_mul_i32 {t1}, {t1}, 24576
        s_add_u32 {sAst[i-1]}, {t1}, {WS_A + (i-1)*8192}""")
    k(f"s_add_u32 {t1}, {t0}, {skq}\ns_mul_i32 {t1}, {t1}, 24576\ns_add_u32 {sAld}, {t1}, {WS_A}")
    def xreads(s):
        for i in range(4):
            k(f"ds_read_b128 {r4(XF+4*i)}, {vXr[i][s&1]} offset:{8192*(s>>1)}")
    for s in range(8):
        if s > 0: xreads(s)
        need = f"X{s}" if s < 4 else f"W{s}"
        wait(need)
        if s == 0: epoch_and_flag()
        k("s_barrier")
        if s == 0: st(1)
        for mat in range(2):
            for hh in range(2):
                k(f"ds_read_b64_tr_b16 {r2(WF+4*mat+2*hh)}, {vTrW} offset:{8192*s+4096*mat+512*hh}")
        if s == 0: xreads(0)
        if s == 5: vm("fl", f"buffer_load_dwordx4 {r4(FLG)}, {vFl}, {sW}, 0 offen sc1")
        k("s_waitcnt lgkmcnt(0)")
        for i in (1, 2, 3, 0):
            for mat in range(2):
                a = ACC + 16*mat + 4*i
                k(f"v_mfma_f32_16x16x32_bf16 {r4(a)}, {r4(WF+4*mat)}, {r4(XF+4*i)}, {'0' if s == 0 else r4(a)}")
    st(2)
    k("s_nop 4")
    for i in range(1, 4):
        for mat in range(2):
            a = ACC + 16*mat + 4*i
            for r in range(4):
                k(f"v_add_u32 v{a+r}, {1 << (TB-1)}, v{a+r}")
            for r in range(4):
                k(f"v_and_or_b32 v{a+r}, v{a+r}, {sNM}, {sT}" if False else f"v_bfi_b32 v{a+r}, {sNM}, v{a+r}, {vt[6]}" if False else f"v_and_b32 v{a+r}, {sNM}, v{a+r}\nv_or_b32 v{a+r}, {sT}, v{a+r}")
            vm("Ast", f"buffer_store_dwordx4 {r4(a)}, {vA}, {sW}, {sAst[i-1]} offen offset:{1024*mat}{m(stA)}")
    k(f"s_mov_b32 {sit}, {SPIN}\nL_hopA:")
    for i in range(3):
        k(f"s_add_u32 {t0}, {sAld}, {8192*i}")
        for mat in range(2):
            k(f"buffer_load_dwordx4 {r4(PA+8*i+4*mat)}, {vA}, {sW}, {t0} offen offset:{1024*mat}{m(ldA)}")
    k("s_waitcnt vmcnt(0)")
    for j in range(24):
        k(f"v_xor_b32 v{PA+j}, {sT}, v{PA+j}")
    k(f"v_or_b32 {vt[0]}, v{PA}, v{PA+1}")
    for j in range(2, 24, 2):
        k(f"v_or3_b32 {vt[0]}, {vt[0]}, v{PA+j}, v{PA+j+1}")
    k(f"""v_and_b32 {vt[0]}, {TM}, {vt[0]}
    v_cmp_ne_u32 vcc, 0, {vt[0]}
    s_cbranch_vccz L_hopA_done
    s_sub_u32 {sit}, {sit}, 1
    s_cmp_lg_u32 {sit}, 0
    s_cbranch_scc1 L_hopA
    L_hopA_done:""")
    st(3)
    for mat in range(2):
        a = ACC + 16*mat
        for r in range(4):
            k(f"v_add_f32 v{PA+4*mat+r}, v{PA+4*mat+r}, v{PA+8+4*mat+r}")
            k(f"v_add_f32 v{a+r}, v{a+r}, v{PA+16+4*mat+r}")
        for r in range(4):
            k(f"v_add_f32 v{a+r}, v{a+r}, v{PA+4*mat+r}")
    g, u = ACC, ACC + 16
    k(f"""v_cvt_pk_bf16_f32 v{G}, v{g}, v{g+1}
    v_cvt_pk_bf16_f32 v{G+1}, v{g+2}, v{g+3}
    v_cvt_pk_bf16_f32 v{G+2}, v{u}, v{u+1}
    v_cvt_pk_bf16_f32 v{G+3}, v{u+2}, v{u+3}
    s_mov_b32 {t0}, 0xffff0000
    s_mov_b32 {t1}, 0xbdd2d3e8
    v_lshlrev_b32 v{g}, 16, v{G}
    v_and_b32 v{g+1}, {t0}, v{G}
    v_lshlrev_b32 v{g+2}, 16, v{G+1}
    v_and_b32 v{g+3}, {t0}, v{G+1}
    v_lshlrev_b32 v{u}, 16, v{G+2}
    v_and_b32 v{u+1}, {t0}, v{G+2}
    v_lshlrev_b32 v{u+2}, 16, v{G+3}
    v_and_b32 v{u+3}, {t0}, v{G+3}""")
    import struct
    f2u = lambda f: struct.unpack("<I", struct.pack("<f", f))[0]
    c1 = -2.0 * 1.4426950408889634 * 0.7978845608028654
    c2 = c1 * 0.044715
    k(f"s_mov_b32 {t1}, {f2u(c2):#x}\nv_mov_b32 {vt[1]}, {f2u(c1):#x}")
    for r in range(4): k(f"v_mul_f32 v{G+4+r}, v{g+r}, v{g+r}")
    for r in range(4): k(f"v_fma_f32 v{G+4+r}, v{G+4+r}, {t1}, {vt[1]}")
    for r in range(4): k(f"v_mul_f32 v{G+4+r}, v{G+4+r}, v{g+r}")
    for r in range(4): k(f"v_exp_f32 v{G+4+r}, v{G+4+r}")
    for r in range(4): k(f"v_add_f32 v{G+4+r}, 1.0, v{G+4+r}")
    for r in range(4): k(f"v_rcp_f32 v{G+4+r}, v{G+4+r}")
    for r in range(4): k(f"v_mul_f32 v{G+4+r}, v{G+4+r}, v{g+r}")
    k(f"""v_cvt_pk_bf16_f32 v{G}, v{G+4}, v{G+5}
    v_cvt_pk_bf16_f32 v{G+1}, v{G+6}, v{G+7}
    s_nop 0
    v_lshlrev_b32 v{G+4}, 16, v{G}
    v_and_b32 v{G+5}, {t0}, v{G}
    v_lshlrev_b32 v{G+6}, 16, v{G+1}
    v_and_b32 v{G+7}, {t0}, v{G+1}""")
    for r in range(4): k(f"v_mul_f32 v{G+4+r}, v{G+4+r}, v{u+r}")
    k(f"""v_cvt_pk_bf16_f32 v{G+8}, v{G+4}, v{G+5}
    v_cvt_pk_bf16_f32 v{G+9}, v{G+6}, v{G+7}
    v_min_u32 v{G+8}, -2, v{G+8}
    s_nop 1
    v_permlane16_swap_b32 v{G+8}, v{G+10}
    v_permlane16_swap_b32 v{G+9}, v{G+11}
    s_mov_b32 exec_lo, 0xffff
    s_mov_b32 exec_hi, 0xffff
    buffer_store_dwordx4 {r4(G+8)}, {vHs}, {sW}, 0 offen{m(stH)}
    s_mov_b64 exec, -1""")
    st(4)
    k("s_branch L_p2")
    k("L_spare:")
    ops.clear()
    vm("E", f"buffer_load_dword {vE}, {vE}, {sW}, 0 offen sc1")
    dmaD()
    common_addr()
    wait("E")
    epoch_and_flag()
    if stamps:
        st(1); st(2); st(3)
    k(f"""s_cmp_lg_u32 s2, 224
    s_cbranch_scc1 L_noupd
    s_cmp_lg_u32 {sw}, 0
    s_cbranch_scc1 L_noupd
    s_mov_b32 {sit}, {SPIN}
    v_lshlrev_b32 {vt[0]}, 4, {vL}
    L_upd:
    s_sleep 8""")
    for j in range(4):
        k(f"s_mov_b32 {t0}, {WS_FL + 1024*j}\nbuffer_load_dwordx4 {r4(PA+4*j)}, {vt[0]}, {sW}, {t0} offen sc1")
    k("s_waitcnt vmcnt(0)")
    for j in range(16): k(f"v_xor_b32 v{PA+j}, {sF}, v{PA+j}")
    k(f"v_or_b32 {vt[1]}, v{PA}, v{PA+1}")
    for j in range(2, 16, 2): k(f"v_or3_b32 {vt[1]}, {vt[1]}, v{PA+j}, v{PA+j+1}")
    k(f"""v_cmp_ne_u32 vcc, 0, {vt[1]}
    s_cbranch_vccz L_upd_done
    s_sub_u32 {sit}, {sit}, 1
    s_cmp_lg_u32 {sit}, 0
    s_cbranch_scc1 L_upd
    L_upd_done:
    s_add_u32 {t0}, {sE}, 1
    v_mov_b32 {vt[1]}, {t0}
    v_mov_b32 {vt[2]}, 0
    s_mov_b64 exec, 1
    buffer_store_dword {vt[1]}, {vt[2]}, {sW}, 0 offen sc1
    s_mov_b64 exec, -1
    L_noupd:""")
    k(f"""s_mul_i32 {t0}, {sg}, 28
    s_add_u32 {t0}, {t0}, 12
    s_add_u32 {t0}, {t0}, {sw}
    s_mul_i32 {t0}, {t0}, 24576
    s_add_u32 {t0}, {t0}, {WS_A}
    v_mov_b32 {vt[0]}, 0
    s_mov_b32 {sit}, {SPIN}
    L_pre:
    s_sleep 4
    buffer_load_dwordx4 {r4(PA)}, {vt[0]}, {sW}, {t0} offen sc1
    s_waitcnt vmcnt(0)
    v_xor_b32 v{PA}, {sT}, v{PA}
    v_xor_b32 v{PA+1}, {sT}, v{PA+1}
    v_or_b32 v{PA}, v{PA}, v{PA+1}
    v_and_b32 v{PA}, {TM}, v{PA}
    v_cmp_ne_u32 vcc, 0, v{PA}
    s_cbranch_vccz L_pre_done
    s_sub_u32 {sit}, {sit}, 1
    s_cmp_lg_u32 {sit}, 0
    s_cbranch_scc1 L_pre
    L_pre_done:
    buffer_load_dwordx4 {r4(FLG)}, {vFl}, {sW}, 0 offen sc1
    s_waitcnt vmcnt(0)""")
    st(4)
    k("L_p2:")
    k(f"""s_mov_b32 {sit}, {SPIN}
    L_fl:
    v_xor_b32 v{FLG}, {sF}, v{FLG}
    v_xor_b32 v{FLG+1}, {sF}, v{FLG+1}
    v_xor_b32 v{FLG+2}, {sF}, v{FLG+2}
    v_xor_b32 v{FLG+3}, {sF}, v{FLG+3}
    v_or3_b32 v{FLG}, v{FLG}, v{FLG+1}, v{FLG+2}
    v_or_b32 v{FLG}, v{FLG}, v{FLG+3}
    v_cmp_ne_u32 vcc, 0, v{FLG}
    s_cbranch_vccz L_fl_done
    buffer_load_dwordx4 {r4(FLG)}, {vFl}, {sW}, 0 offen sc1
    s_waitcnt vmcnt(0)
    s_sub_u32 {sit}, {sit}, 1
    s_cmp_lg_u32 {sit}, 0
    s_cbranch_scc1 L_fl
    L_fl_done:""")
    def hloads():
        for s in range(7):
            k(f"s_add_u32 {t0}, {sHld}, {4096*s}\nbuffer_load_dwordx4 {r4(HF+4*s)}, {vHl}, {sW}, {t0} offen{m(ldH)}")
    hloads()
    k("s_barrier")
    for s in range(7):
        for nt in range(4):
            for hh in range(2):
                k(f"ds_read_b64_tr_b16 {r2(WD+16*s+4*nt+2*hh)}, {vTrD[nt]} offset:{4096*s+512*hh}")
    k(f"s_mov_b32 {sit}, {SPIN}\nL_hopB:\ns_waitcnt vmcnt(0)")
    k(f"""v_max3_u32 {vt[0]}, v{HF}, v{HF+4}, v{HF+8}
    v_max3_u32 {vt[1]}, v{HF+12}, v{HF+16}, v{HF+20}
    v_max3_u32 {vt[0]}, {vt[0]}, {vt[1]}, v{HF+24}
    v_cmp_eq_u32 vcc, -1, {vt[0]}
    s_cbranch_vccz L_hopB_done""")
    hloads()
    k(f"""s_sub_u32 {sit}, {sit}, 1
    s_cmp_lg_u32 {sit}, 0
    s_cbranch_scc1 L_hopB
    s_waitcnt vmcnt(0)
    L_hopB_done:""")
    st(5)
    k("s_waitcnt lgkmcnt(0)")
    for s in range(7):
        for nt in range(4):
            a = ACC2 + 4*nt
            k(f"v_mfma_f32_16x16x32_bf16 {r4(a)}, {r4(WD+16*s+4*nt)}, {r4(HF+4*s)}, {'0' if s == 0 else r4(a)}")
    k("s_nop 4")
    for nt in range(4):
        a = ACC2 + 4*nt
        if nt == 3: k("s_nop 1")
        for r in range(4): k(f"v_add_u32 v{a+r}, {1 << (TB-1)}, v{a+r}")
        for r in range(4): k(f"v_and_b32 v{a+r}, {sNM}, v{a+r}\nv_or_b32 v{a+r}, {sT}, v{a+r}")
        k(f"buffer_store_dwordx4 {r4(a)}, {vCs}, {sW}, {sCst} offen offset:{256*nt} sc1")
    st(6)
    k(f"s_mov_b32 {sit}, {SPIN}\nL_hopC:")
    for jj in range(4):
        k(f"s_add_u32 {t0}, {sCld}, {4096*jj}\nbuffer_load_dwordx4 {r4(PC+4*jj)}, {vCl}, {sW}, {t0} offen sc1")
    k("s_waitcnt vmcnt(0)")
    for j in range(16): k(f"v_xor_b32 v{PC+j}, {sT}, v{PC+j}")
    k(f"v_or_b32 {vt[0]}, v{PC}, v{PC+1}")
    for j in range(2, 16, 2): k(f"v_or3_b32 {vt[0]}, {vt[0]}, v{PC+j}, v{PC+j+1}")
    k(f"""v_and_b32 {vt[0]}, {TM}, {vt[0]}
    v_cmp_ne_u32 vcc, 0, {vt[0]}
    s_cbranch_vccz L_hopC_done
    s_sub_u32 {sit}, {sit}, 1
    s_cmp_lg_u32 {sit}, 0
    s_cbranch_scc1 L_hopC
    L_hopC_done:""")
    st(7)
    for r in range(4):
        k(f"v_add_f32 v{PC+r}, v{PC+r}, v{PC+4+r}\nv_add_f32 v{PC+8+r}, v{PC+8+r}, v{PC+12+r}")
    for r in range(4):
        k(f"v_add_f32 v{PC+r}, v{PC+r}, v{PC+8+r}")
    k(f"""s_nop 1
    v_permlane32_swap_b32 v{PC}, v{PC+2}
    v_permlane32_swap_b32 v{PC+1}, v{PC+3}
    s_nop 1
    v_add_f32 v{PC}, v{PC}, v{PC+2}
    v_add_f32 v{PC+1}, v{PC+1}, v{PC+3}
    s_nop 1
    v_permlane16_swap_b32 v{PC}, v{PC+1}
    s_nop 1
    v_add_f32 v{PC}, v{PC}, v{PC+1}
    v_cvt_pk_bf16_f32 v{PC}, v{PC}, v{PC}
    buffer_store_short v{PC}, {vO}, {sO}, 0 offen""")
    if stamps:
        k("s_waitcnt vmcnt(0)")
        st(8)
        k.store_stamps(0, tmpv=28)
    k("L_end:\ns_endpgm")
    return k

if __name__ == "__main__":
    print(assemble([gen(stamps=True)], "f1_st.s"))
    print(assemble([gen(stamps=True, ntw=False, ntd=False)], "f1_st_pl.s"))
    print(assemble([gen(stamps=True, stA="", stH="")], "f1_st_P.s"))
    print(assemble([gen()], "f1.s"))
    print(assemble([gen(ntw=False, ntd=False)], "f1_pl.s"))
```

```python
import sys
sys.path.insert(0, "bench")
from asmlib import *

WB = 7340032
WS_E = 0
WS_FL = 4096
WS_H = 1 << 20
WS_A = 2 << 20
WS_C = 16 << 20
L_W, L_X, L_D = 0, 65536, 98304
LDS = 98304 + 28672
TB = 12
TM = (1 << TB) - 1
SPIN = 30000

def gen(name=MAIN, ntw=True, ntd=True, stA="sc1", stH="sc1", stamps=False, ldA="sc1", ldH="sc1", pace=None):
    k = K(name, 256, 256, LDS, vgpr=240, sgpr=96)
    cnt = [0]
    def st(i):
        if stamps or (pace and i == 0): k.stamp(i)
        if pace and pace[0] == i:
            cnt[0] += 1
            k(f"L_pace{cnt[0]}:\ns_memrealtime s[90:91]\ns_waitcnt lgkmcnt(0)\ns_sub_u32 s90, s90, s64\ns_cmp_lt_u32 s90, {pace[1]}\ns_cbranch_scc1 L_pace{cnt[0]}")
    NTW = " nt" if ntw else ""
    NTD = " nt" if ntd else ""
    m = lambda s: (" " + s) if s else ""
    sX, sG, sU, sD, sO, sW = "s[16:19]", "s[20:23]", "s[24:27]", "s[28:31]", "s[32:35]", "s[36:39]"
    sw = "s63"; sg = "s40"; sr = "s41"; skq = "s42"; sC = "s43"; sn64 = "s44"; skh = "s45"
    sT = "s46"; sF = "s47"; sE = "s48"; sit = "s49"; t0, t1, t2, t3 = "s50", "s51", "s52", "s53"
    sAst = ["s54", "s55", "s56"]; sAld = "s57"; sHld = "s58"; sCst = "s59"; sCld = "s60"; sNM = "s61"
    vL = "v1"; vWs = "v2"; vXs = ["v3", "v4"]; vDs = "v5"; vTrW = "v6"
    vXr = [[f"v{8+2*i+p}" for p in range(2)] for i in range(4)]
    vTrD = [f"v{16+i}" for i in range(4)]
    vA = "v20"; vHs = "v21"; vHl = "v22"; vCs = "v23"; vCl = "v24"; vO = "v25"; vFl = "v26"; vE = "v27"
    vt = [f"v{28+i}" for i in range(12)]
    FLG = 40
    ONES = 44
    G = 48
    ACC = 64; XF = 96; WF = 112; PA = 96; WD = 128; HF = 96; ACC2 = 64; PC = 96
    r4 = lambda b: f"v[{b}:{b+3}]"
    r2 = lambda b: f"v[{b}:{b+1}]"

    k(f"""s_cmp_ge_u32 s2, 256
    s_cbranch_scc1 L_end
    s_load_dwordx8 s[4:11], s[0:1], 0
    s_load_dwordx2 s[14:15], s[0:1], 48
    s_load_dwordx2 s[12:13], s[0:1], 32
    v_lshrrev_b32 {vt[0]}, 6, v0
    v_and_b32 {vL}, 63, v0
    s_and_b32 {sg}, s2, 7
    v_readfirstlane_b32 {sw}, {vt[0]}
    s_lshr_b32 {sr}, s2, 3
    s_and_b32 {skq}, {sr}, 3
    s_lshr_b32 {sC}, {sr}, 2
    s_mul_i32 {t0}, {sg}, 7
    s_add_u32 {sC}, {sC}, {t0}
    s_and_b32 {sn64}, {sr}, 15
    s_lshr_b32 {skh}, {sr}, 4""")
    st(0)
    k(f"""v_lshrrev_b32 {vt[0]}, 3, {vL}
    v_bfe_u32 {vt[1]}, {vL}, 1, 2
    v_bfe_u32 {vt[2]}, {vL}, 4, 1
    s_and_b32 {t0}, {sw}, 1
    s_lshl_b32 {t0}, {t0}, 1
    v_or_b32 {vt[2]}, {t0}, {vt[2]}
    v_xor_b32 {vt[1]}, {vt[1]}, {vt[2]}
    v_lshlrev_b32 {vt[1]}, 5, {vt[1]}
    v_and_b32 {vt[2]}, 1, {vL}
    v_lshl_or_b32 {vt[1]}, {vt[2]}, 4, {vt[1]}
    v_mul_u32_u24 {vWs}, 7168, {vt[0]}
    v_add_u32 {vWs}, {vWs}, {vt[1]}
    v_lshlrev_b32 {vDs}, 11, {vt[0]}
    v_add_u32 {vDs}, {vDs}, {vt[1]}
    s_lshl_b32 {t0}, {skq}, 8
    s_lshl_b32 {t1}, {sw}, 3
    s_add_u32 {t0}, {t0}, {t1}
    s_mul_i32 {t0}, {t0}, 7168
    s_lshl_b32 {t2}, {sC}, 7
    s_add_u32 {t0}, {t0}, {t2}
    v_add_u32 {vWs}, {t0}, {vWs}
    s_mul_i32 {t0}, {sg}, 448
    s_mul_i32 {t2}, {skh}, 224
    s_add_u32 {t0}, {t0}, {t2}
    s_add_u32 {t0}, {t0}, {t1}
    s_lshl_b32 {t0}, {t0}, 11
    s_lshl_b32 {t2}, {sn64}, 7
    s_add_u32 {t0}, {t0}, {t2}
    v_add_u32 {vDs}, {t0}, {vDs}""")
    k(f"""v_lshrrev_b32 {vt[1]}, 4, {vL}
    v_and_b32 {vt[2]}, 7, {vL}
    v_xor_b32 {vt[1]}, {vt[1]}, {vt[2]}
    v_lshlrev_b32 {vt[1]}, 4, {vt[1]}
    v_lshl_or_b32 {vXs[0]}, {vt[0]}, 11, {vt[1]}
    s_lshl_b32 {t0}, {sw}, 15
    s_lshl_b32 {t2}, {skq}, 9
    s_add_u32 {t0}, {t0}, {t2}
    v_add_u32 {vXs[0]}, {t0}, {vXs[0]}
    v_xor_b32 {vXs[1]}, 64, {vXs[0]}
    v_add_u32 {vXs[1]}, 0x4000, {vXs[1]}""")
    k(f"""s_mul_i32 {t0}, {sg}, 14
    s_lshr_b32 {t1}, {sr}, 2
    s_lshl_b32 {t1}, {t1}, 1
    s_add_u32 {t0}, {t0}, {t1}
    s_lshr_b32 {t1}, {sw}, 1
    s_add_u32 {t0}, {t0}, {t1}
    s_lshl_b32 {t0}, {t0}, 2
    s_add_u32 {t0}, {t0}, {skq}
    s_lshl_b32 {t0}, {t0}, 10
    s_and_b32 {t1}, {sw}, 1
    s_lshl_b32 {t1}, {t1}, 9
    s_add_u32 {t0}, {t0}, {t1}
    s_add_u32 {t0}, {t0}, {WS_H}
    v_and_b32 {vt[1]}, 15, {vL}
    v_lshlrev_b32 {vt[1]}, 4, {vt[1]}
    v_lshrrev_b32 {vt[2]}, 5, {vL}
    v_lshl_or_b32 {vHs}, {vt[2]}, 8, {vt[1]}
    v_add_u32 {vHs}, {t0}, {vHs}
    v_mov_b32 v{ONES}, -1
    v_mov_b32 v{ONES+1}, -1
    v_mov_b32 v{ONES+2}, -1
    v_mov_b32 v{ONES+3}, -1
    v_mov_b32 {vE}, 0""")
    k("s_waitcnt lgkmcnt(0)")
    for i, (d, src, sz) in enumerate([(20, 6, WB), (24, 8, WB), (36, 14, 1 << 28), (16, 4, 131072), (28, 10, WB), (32, 12, 131072)]):
        k(f"s_mov_b32 s{d}, s{src}\ns_mov_b32 s{d+1}, s{src+1}\ns_mov_b32 s{d+2}, {sz}\ns_mov_b32 s{d+3}, 0x00020000")
    k(f"s_cmp_ge_u32 {sr}, 28\ns_cbranch_scc1 L_spare")
    ops = []
    def vm(tag, text):
        ops.append(tag); k(text)
    def wait(tag, extra=""):
        idx = max(i for i, t in enumerate(ops) if t == tag)
        k(f"s_waitcnt vmcnt({len(ops)-1-idx}){extra}")
    def dmaW(s):
        for mat in range(2):
            k(f"s_mov_b32 m0, {t1}\ns_add_u32 {t1}, {t1}, 4096")
            vm(f"W{s}", f"buffer_load_dwordx4 {vWs}, {[sG,sU][mat]}, {t0} offen{NTW} lds")
        k(f"s_add_u32 {t0}, {t0}, {32*7168}")
    def dmaX(j):
        for n in range(2):
            k(f"s_mov_b32 m0, {t2}\ns_add_u32 {t2}, {t2}, {1024 if n == 0 else 8192-1024-128}")
            vm(f"X{j}", f"buffer_load_dwordx4 {vXs[n]}, {sX}, 0 offen offset:{128*j} lds")
    def dmaD():
        k(f"s_lshl_b32 {t1}, {sw}, 10\ns_add_u32 {t1}, {t1}, {L_D}\ns_mov_b32 {t0}, 0")
        for s in range(7):
            k(f"s_mov_b32 m0, {t1}\ns_add_u32 {t1}, {t1}, 4096")
            vm("D", f"buffer_load_dwordx4 {vDs}, {sD}, {t0} offen{NTD} lds")
            if s < 6: k(f"s_add_u32 {t0}, {t0}, {32*2048}")
    k(f"s_mov_b32 {t0}, 0\ns_lshl_b32 {t1}, {sw}, 10\ns_lshl_b32 {t2}, {sw}, 11\ns_add_u32 {t2}, {t2}, {L_X}")
    dmaW(0)
    k("s_mov_b64 exec, 0x0000ffff0000ffff" if False else "s_mov_b32 exec_lo, 0xffff\ns_mov_b32 exec_hi, 0xffff")
    vm("clr", f"buffer_store_dwordx4 {r4(ONES)}, {vHs}, {sW}, 0 offen sc1")
    k("s_mov_b64 exec, -1")
    vm("E", f"buffer_load_dword {vE}, {vE}, {sW}, 0 offen sc1")
    dmaX(0); dmaW(1); dmaX(1); dmaW(2); dmaX(2); dmaW(3); dmaX(3)
    for s in range(4, 8): dmaW(s)
    dmaD()
    def common_addr():
        k(f"""v_lshrrev_b32 {vt[0]}, 4, {vL}
        v_bfe_u32 {vt[1]}, {vL}, 2, 2
        v_lshl_or_b32 {vt[1]}, {vt[0]}, 3, {vt[1]}
        v_lshlrev_b32 {vt[1]}, 7, {vt[1]}
        v_and_b32 {vt[2]}, 3, {vL}
        v_lshl_or_b32 {vt[1]}, {vt[2]}, 3, {vt[1]}
        v_bfe_u32 {vt[2]}, {vL}, 3, 2""")
        k(f"v_xor_b32 {vt[3]}, {sw}, {vt[2]}\nv_lshl_or_b32 {vTrW}, {vt[3]}, 5, {vt[1]}")
        k(f"v_add_u32 {vt[1]}, {L_D}, {vt[1]}")
        for nt in range(4):
            k(f"v_xor_b32 {vt[3]}, {nt}, {vt[2]}\nv_lshl_or_b32 {vTrD[nt]}, {vt[3]}, 5, {vt[1]}")
        k(f"""v_lshlrev_b32 {vHl}, 4, {vL}
        s_mul_i32 {t0}, {sg}, 14
        s_mul_i32 {t1}, {skh}, 7
        s_add_u32 {t0}, {t0}, {t1}
        s_lshl_b32 {t0}, {t0}, 2
        s_add_u32 {t0}, {t0}, {sw}
        s_lshl_b32 {t0}, {t0}, 10
        s_add_u32 {sHld}, {t0}, {WS_H}""")
        k(f"""v_bfe_u32 {vt[1]}, {vL}, 2, 2
        v_lshlrev_b32 {vt[1]}, 14, {vt[1]}
        v_lshl_or_b32 {vt[1]}, {vt[0]}, 6, {vt[1]}
        v_and_b32 {vt[2]}, 3, {vL}
        v_lshl_or_b32 {vCs}, {vt[2]}, 4, {vt[1]}
        s_lshl_b32 {t0}, {sg}, 1
        s_add_u32 {t0}, {t0}, {skh}
        s_lshl_b32 {t1}, {sn64}, 4
        s_lshl_b32 {t2}, {sw}, 2
        s_add_u32 {t2}, {t2}, {t1}
        s_lshl_b32 {t2}, {t2}, 4
        s_add_u32 {t2}, {t2}, {t0}
        s_lshl_b32 {t2}, {t2}, 10
        s_add_u32 {sCst}, {t2}, {WS_C}""")
        k(f"""s_add_u32 {t1}, {t1}, {t0}
        s_lshl_b32 {t1}, {t1}, 14
        s_lshl_b32 {t2}, {sw}, 8
        s_add_u32 {t1}, {t1}, {t2}
        s_add_u32 {sCld}, {t1}, {WS_C}
        v_and_b32 {vt[1]}, 15, {vL}
        v_lshlrev_b32 {vt[1]}, 4, {vt[1]}
        v_lshl_or_b32 {vCl}, {vt[0]}, 10, {vt[1]}""")
        k(f"""v_bfe_u32 {vt[1]}, {vL}, 2, 2
        v_lshlrev_b32 {vt[1]}, 3, {vt[1]}
        v_lshl_or_b32 {vt[1]}, {vt[0]}, 1, {vt[1]}
        v_lshl_or_b32 {vO}, {vt[2]}, 11, {vt[1]}
        s_lshl_b32 {t0}, {t0}, 13
        s_lshl_b32 {t1}, {sn64}, 7
        s_add_u32 {t0}, {t0}, {t1}
        s_lshl_b32 {t1}, {sw}, 5
        s_add_u32 {t0}, {t0}, {t1}
        v_add_u32 {vO}, {t0}, {vO}""")
        k(f"""v_and_b32 {vt[1]}, 31, {vL}
        v_lshlrev_b32 {vFl}, 4, {vt[1]}
        s_lshl_b32 {t0}, {sg}, 9
        s_add_u32 {t0}, {t0}, {WS_FL}
        v_add_u32 {vFl}, {t0}, {vFl}
        s_mov_b32 {sNM}, {(~TM) & 0xffffffff}""")
    def epoch_and_flag():
        k(f"""v_readfirstlane_b32 {sE}, {vE}
        s_lshl_b32 {t0}, {sg}, 5
        s_add_u32 {t0}, {t0}, {sr}
        s_lshl_b32 {t0}, {t0}, 4
        s_lshl_b32 {t1}, {sw}, 2
        s_add_u32 {t0}, {t0}, {t1}
        s_add_u32 {t0}, {t0}, {WS_FL}
        s_add_u32 {sF}, {sE}, 0x9e3779b9
        s_and_b32 {sT}, {sF}, {TM}
        v_mov_b32 {vt[4]}, {t0}
        v_mov_b32 {vt[5]}, {sF}
        s_mov_b64 exec, 1""")
        vm("flag", f"buffer_store_dword {vt[5]}, {vt[4]}, {sW}, 0 offen sc1")
        k("s_mov_b64 exec, -1")
    common_addr()
    k(f"""v_lshrrev_b32 {vt[0]}, 4, {vL}
    v_bfe_u32 {vt[1]}, {vL}, 1, 3
    v_xor_b32 {vt[0]}, {vt[0]}, {vt[1]}
    v_lshlrev_b32 {vt[0]}, 4, {vt[0]}
    v_and_b32 {vt[1]}, 15, {vL}
    v_lshl_or_b32 {vt[0]}, {vt[1]}, 7, {vt[0]}""")
    for i in range(4):
        k(f"""s_xor_b32 {t0}, {skq}, {i}
        s_lshl_b32 {t0}, {t0}, 11
        s_add_u32 {t0}, {t0}, {L_X}
        v_add_u32 {vXr[i][0]}, {t0}, {vt[0]}
        v_xor_b32 {vXr[i][1]}, 64, {vXr[i][0]}""")
    k(f"""v_lshlrev_b32 {vA}, 4, {vL}
    s_lshl_b32 {t0}, {sw}, 11
    v_add_u32 {vA}, {t0}, {vA}
    s_lshl_b32 {t0}, {sC}, 2""")
    for i in range(1, 4):
        k(f"""s_xor_b32 {t1}, {skq}, {i}
        s_add_u32 {t1}, {t1}, {t0}
        s_mul_i32 {t1}, {t1}, 24576
        s_add_u32 {sAst[i-1]}, {t1}, {WS_A + (i-1)*8192}""")
    k(f"s_add_u32 {t1}, {t0}, {skq}\ns_mul_i32 {t1}, {t1}, 24576\ns_add_u32 {sAld}, {t1}, {WS_A}")
    def xreads(s):
        for i in range(4):
            k(f"ds_read_b128 {r4(XF+4*i)}, {vXr[i][s&1]} offset:{8192*(s>>1)}")
    for s in range(8):
        if s > 0: xreads(s)
        need = f"X{s}" if s < 4 else f"W{s}"
        wait(need)
        if s == 0: epoch_and_flag()
        k("s_barrier")
        if s == 0: st(1)
        for mat in range(2):
            for hh in range(2):
                k(f"ds_read_b64_tr_b16 {r2(WF+4*mat+2*hh)}, {vTrW} offset:{8192*s+4096*mat+512*hh}")
        if s == 0: xreads(0)
        if s == 5: vm("fl", f"buffer_load_dwordx4 {r4(FLG)}, {vFl}, {sW}, 0 offen sc1")
        k("s_waitcnt lgkmcnt(0)")
        for i in (1, 2, 3, 0):
            for mat in range(2):
                a = ACC + 16*mat + 4*i
                k(f"v_mfma_f32_16x16x32_bf16 {r4(a)}, {r4(WF+4*mat)}, {r4(XF+4*i)}, {'0' if s == 0 else r4(a)}")
    st(2)
    k("s_nop 4")
    for i in range(1, 4):
        for mat in range(2):
            a = ACC + 16*mat + 4*i
            for r in range(4):
                k(f"v_add_u32 v{a+r}, {1 << (TB-1)}, v{a+r}")
            for r in range(4):
                k(f"v_and_or_b32 v{a+r}, v{a+r}, {sNM}, {sT}" if False else f"v_bfi_b32 v{a+r}, {sNM}, v{a+r}, {vt[6]}" if False else f"v_and_b32 v{a+r}, {sNM}, v{a+r}\nv_or_b32 v{a+r}, {sT}, v{a+r}")
            vm("Ast", f"buffer_store_dwordx4 {r4(a)}, {vA}, {sW}, {sAst[i-1]} offen offset:{1024*mat}{m(stA)}")
    k(f"s_mov_b32 {sit}, {SPIN}\nL_hopA:")
    for i in range(3):
        k(f"s_add_u32 {t0}, {sAld}, {8192*i}")
        for mat in range(2):
            k(f"buffer_load_dwordx4 {r4(PA+8*i+4*mat)}, {vA}, {sW}, {t0} offen offset:{1024*mat}{m(ldA)}")
    k("s_waitcnt vmcnt(0)")
    for j in range(24):
        k(f"v_xor_b32 v{PA+j}, {sT}, v{PA+j}")
    k(f"v_or_b32 {vt[0]}, v{PA}, v{PA+1}")
    for j in range(2, 24, 2):
        k(f"v_or3_b32 {vt[0]}, {vt[0]}, v{PA+j}, v{PA+j+1}")
    k(f"""v_and_b32 {vt[0]}, {TM}, {vt[0]}
    v_cmp_ne_u32 vcc, 0, {vt[0]}
    s_cbranch_vccz L_hopA_done
    s_sub_u32 {sit}, {sit}, 1
    s_cmp_lg_u32 {sit}, 0
    s_cbranch_scc1 L_hopA
    L_hopA_done:""")
    st(3)
    for mat in range(2):
        a = ACC + 16*mat
        for r in range(4):
            k(f"v_add_f32 v{PA+4*mat+r}, v{PA+4*mat+r}, v{PA+8+4*mat+r}")
            k(f"v_add_f32 v{a+r}, v{a+r}, v{PA+16+4*mat+r}")
        for r in range(4):
            k(f"v_add_f32 v{a+r}, v{a+r}, v{PA+4*mat+r}")
    g, u = ACC, ACC + 16
    k(f"""v_cvt_pk_bf16_f32 v{G}, v{g}, v{g+1}
    v_cvt_pk_bf16_f32 v{G+1}, v{g+2}, v{g+3}
    v_cvt_pk_bf16_f32 v{G+2}, v{u}, v{u+1}
    v_cvt_pk_bf16_f32 v{G+3}, v{u+2}, v{u+3}
    s_mov_b32 {t0}, 0xffff0000
    s_mov_b32 {t1}, 0xbdd2d3e8
    v_lshlrev_b32 v{g}, 16, v{G}
    v_and_b32 v{g+1}, {t0}, v{G}
    v_lshlrev_b32 v{g+2}, 16, v{G+1}
    v_and_b32 v{g+3}, {t0}, v{G+1}
    v_lshlrev_b32 v{u}, 16, v{G+2}
    v_and_b32 v{u+1}, {t0}, v{G+2}
    v_lshlrev_b32 v{u+2}, 16, v{G+3}
    v_and_b32 v{u+3}, {t0}, v{G+3}""")
    import struct
    f2u = lambda f: struct.unpack("<I", struct.pack("<f", f))[0]
    c1 = -2.0 * 1.4426950408889634 * 0.7978845608028654
    c2 = c1 * 0.044715
    k(f"s_mov_b32 {t1}, {f2u(c2):#x}\nv_mov_b32 {vt[1]}, {f2u(c1):#x}")
    for r in range(4): k(f"v_mul_f32 v{G+4+r}, v{g+r}, v{g+r}")
    for r in range(4): k(f"v_fma_f32 v{G+4+r}, v{G+4+r}, {t1}, {vt[1]}")
    for r in range(4): k(f"v_mul_f32 v{G+4+r}, v{G+4+r}, v{g+r}")
    for r in range(4): k(f"v_exp_f32 v{G+4+r}, v{G+4+r}")
    for r in range(4): k(f"v_add_f32 v{G+4+r}, 1.0, v{G+4+r}")
    for r in range(4): k(f"v_rcp_f32 v{G+4+r}, v{G+4+r}")
    for r in range(4): k(f"v_mul_f32 v{G+4+r}, v{G+4+r}, v{g+r}")
    k(f"""v_cvt_pk_bf16_f32 v{G}, v{G+4}, v{G+5}
    v_cvt_pk_bf16_f32 v{G+1}, v{G+6}, v{G+7}
    s_nop 0
    v_lshlrev_b32 v{G+4}, 16, v{G}
    v_and_b32 v{G+5}, {t0}, v{G}
    v_lshlrev_b32 v{G+6}, 16, v{G+1}
    v_and_b32 v{G+7}, {t0}, v{G+1}""")
    for r in range(4): k(f"v_mul_f32 v{G+4+r}, v{G+4+r}, v{u+r}")
    k(f"""v_cvt_pk_bf16_f32 v{G+8}, v{G+4}, v{G+5}
    v_cvt_pk_bf16_f32 v{G+9}, v{G+6}, v{G+7}
    v_min_u32 v{G+8}, -2, v{G+8}
    s_nop 1
    v_permlane16_swap_b32 v{G+8}, v{G+10}
    v_permlane16_swap_b32 v{G+9}, v{G+11}
    s_mov_b32 exec_lo, 0xffff
    s_mov_b32 exec_hi, 0xffff
    buffer_store_dwordx4 {r4(G+8)}, {vHs}, {sW}, 0 offen{m(stH)}
    s_mov_b64 exec, -1""")
    st(4)
    k("s_branch L_p2")
    k("L_spare:")
    ops.clear()
    vm("E", f"buffer_load_dword {vE}, {vE}, {sW}, 0 offen sc1")
    dmaD()
    common_addr()
    wait("E")
    epoch_and_flag()
    if stamps:
        st(1); st(2); st(3)
    k(f"""s_cmp_lg_u32 s2, 224
    s_cbranch_scc1 L_noupd
    s_cmp_lg_u32 {sw}, 0
    s_cbranch_scc1 L_noupd
    s_mov_b32 {sit}, {SPIN}
    v_lshlrev_b32 {vt[0]}, 4, {vL}
    L_upd:
    s_sleep 8""")
    for j in range(4):
        k(f"s_mov_b32 {t0}, {WS_FL + 1024*j}\nbuffer_load_dwordx4 {r4(PA+4*j)}, {vt[0]}, {sW}, {t0} offen sc1")
    k("s_waitcnt vmcnt(0)")
    for j in range(16): k(f"v_xor_b32 v{PA+j}, {sF}, v{PA+j}")
    k(f"v_or_b32 {vt[1]}, v{PA}, v{PA+1}")
    for j in range(2, 16, 2): k(f"v_or3_b32 {vt[1]}, {vt[1]}, v{PA+j}, v{PA+j+1}")
    k(f"""v_cmp_ne_u32 vcc, 0, {vt[1]}
    s_cbranch_vccz L_upd_done
    s_sub_u32 {sit}, {sit}, 1
    s_cmp_lg_u32 {sit}, 0
    s_cbranch_scc1 L_upd
    L_upd_done:
    s_add_u32 {t0}, {sE}, 1
    v_mov_b32 {vt[1]}, {t0}
    v_mov_b32 {vt[2]}, 0
    s_mov_b64 exec, 1
    buffer_store_dword {vt[1]}, {vt[2]}, {sW}, 0 offen sc1
    s_mov_b64 exec, -1
    L_noupd:""")
    k(f"""s_mul_i32 {t0}, {sg}, 28
    s_add_u32 {t0}, {t0}, 12
    s_add_u32 {t0}, {t0}, {sw}
    s_mul_i32 {t0}, {t0}, 24576
    s_add_u32 {t0}, {t0}, {WS_A}
    v_mov_b32 {vt[0]}, 0
    s_mov_b32 {sit}, {SPIN}
    L_pre:
    s_sleep 4
    buffer_load_dwordx4 {r4(PA)}, {vt[0]}, {sW}, {t0} offen sc1
    s_waitcnt vmcnt(0)
    v_xor_b32 v{PA}, {sT}, v{PA}
    v_xor_b32 v{PA+1}, {sT}, v{PA+1}
    v_or_b32 v{PA}, v{PA}, v{PA+1}
    v_and_b32 v{PA}, {TM}, v{PA}
    v_cmp_ne_u32 vcc, 0, v{PA}
    s_cbranch_vccz L_pre_done
    s_sub_u32 {sit}, {sit}, 1
    s_cmp_lg_u32 {sit}, 0
    s_cbranch_scc1 L_pre
    L_pre_done:
    buffer_load_dwordx4 {r4(FLG)}, {vFl}, {sW}, 0 offen sc1
    s_waitcnt vmcnt(0)""")
    st(4)
    k("L_p2:")
    k(f"""s_mov_b32 {sit}, {SPIN}
    L_fl:
    v_xor_b32 v{FLG}, {sF}, v{FLG}
    v_xor_b32 v{FLG+1}, {sF}, v{FLG+1}
    v_xor_b32 v{FLG+2}, {sF}, v{FLG+2}
    v_xor_b32 v{FLG+3}, {sF}, v{FLG+3}
    v_or3_b32 v{FLG}, v{FLG}, v{FLG+1}, v{FLG+2}
    v_or_b32 v{FLG}, v{FLG}, v{FLG+3}
    v_cmp_ne_u32 vcc, 0, v{FLG}
    s_cbranch_vccz L_fl_done
    buffer_load_dwordx4 {r4(FLG)}, {vFl}, {sW}, 0 offen sc1
    s_waitcnt vmcnt(0)
    s_sub_u32 {sit}, {sit}, 1
    s_cmp_lg_u32 {sit}, 0
    s_cbranch_scc1 L_fl
    L_fl_done:""")
    def hloads():
        for s in range(7):
            k(f"s_add_u32 {t0}, {sHld}, {4096*s}\nbuffer_load_dwordx4 {r4(HF+4*s)}, {vHl}, {sW}, {t0} offen{m(ldH)}")
    hloads()
    k("s_barrier")
    for s in range(7):
        for nt in range(4):
            for hh in range(2):
                k(f"ds_read_b64_tr_b16 {r2(WD+16*s+4*nt+2*hh)}, {vTrD[nt]} offset:{4096*s+512*hh}")
    k(f"s_mov_b32 {sit}, {SPIN}\nL_hopB:\ns_waitcnt vmcnt(0)")
    k(f"""v_max3_u32 {vt[0]}, v{HF}, v{HF+4}, v{HF+8}
    v_max3_u32 {vt[1]}, v{HF+12}, v{HF+16}, v{HF+20}
    v_max3_u32 {vt[0]}, {vt[0]}, {vt[1]}, v{HF+24}
    v_cmp_eq_u32 vcc, -1, {vt[0]}
    s_cbranch_vccz L_hopB_done""")
    hloads()
    k(f"""s_sub_u32 {sit}, {sit}, 1
    s_cmp_lg_u32 {sit}, 0
    s_cbranch_scc1 L_hopB
    s_waitcnt vmcnt(0)
    L_hopB_done:""")
    st(5)
    k("s_waitcnt lgkmcnt(0)")
    for s in range(7):
        for nt in range(4):
            a = ACC2 + 4*nt
            k(f"v_mfma_f32_16x16x32_bf16 {r4(a)}, {r4(WD+16*s+4*nt)}, {r4(HF+4*s)}, {'0' if s == 0 else r4(a)}")
    k("s_nop 4")
    for nt in range(4):
        a = ACC2 + 4*nt
        if nt == 3: k("s_nop 1")
        for r in range(4): k(f"v_add_u32 v{a+r}, {1 << (TB-1)}, v{a+r}")
        for r in range(4): k(f"v_and_b32 v{a+r}, {sNM}, v{a+r}\nv_or_b32 v{a+r}, {sT}, v{a+r}")
        k(f"buffer_store_dwordx4 {r4(a)}, {vCs}, {sW}, {sCst} offen offset:{256*nt} sc1")
    st(6)
    k(f"s_mov_b32 {sit}, {SPIN}\nL_hopC:")
    for jj in range(4):
        k(f"s_add_u32 {t0}, {sCld}, {4096*jj}\nbuffer_load_dwordx4 {r4(PC+4*jj)}, {vCl}, {sW}, {t0} offen sc1")
    k("s_waitcnt vmcnt(0)")
    for j in range(16): k(f"v_xor_b32 v{PC+j}, {sT}, v{PC+j}")
    k(f"v_or_b32 {vt[0]}, v{PC}, v{PC+1}")
    for j in range(2, 16, 2): k(f"v_or3_b32 {vt[0]}, {vt[0]}, v{PC+j}, v{PC+j+1}")
    k(f"""v_and_b32 {vt[0]}, {TM}, {vt[0]}
    v_cmp_ne_u32 vcc, 0, {vt[0]}
    s_cbranch_vccz L_hopC_done
    s_sub_u32 {sit}, {sit}, 1
    s_cmp_lg_u32 {sit}, 0
    s_cbranch_scc1 L_hopC
    L_hopC_done:""")
    st(7)
    for r in range(4):
        k(f"v_add_f32 v{PC+r}, v{PC+r}, v{PC+4+r}\nv_add_f32 v{PC+8+r}, v{PC+8+r}, v{PC+12+r}")
    for r in range(4):
        k(f"v_add_f32 v{PC+r}, v{PC+r}, v{PC+8+r}")
    k(f"""s_nop 1
    v_permlane32_swap_b32 v{PC}, v{PC+2}
    v_permlane32_swap_b32 v{PC+1}, v{PC+3}
    s_nop 1
    v_add_f32 v{PC}, v{PC}, v{PC+2}
    v_add_f32 v{PC+1}, v{PC+1}, v{PC+3}
    s_nop 1
    v_permlane16_swap_b32 v{PC}, v{PC+1}
    s_nop 1
    v_add_f32 v{PC}, v{PC}, v{PC+1}
    v_cvt_pk_bf16_f32 v{PC}, v{PC}, v{PC}
    buffer_store_short v{PC}, {vO}, {sO}, 0 offen""")
    if stamps or pace:
        k("s_waitcnt vmcnt(0)")
        st(8)
    if stamps:
        k.store_stamps(0, tmpv=28)
    k("L_end:\ns_endpgm")
    return k

if __name__ == "__main__" and len(sys.argv) > 1 and sys.argv[1] == "pace":
    for p in (0, 2, 4, 6, 8):
        print(assemble([gen(pace=(p, 3000), ntw=False, ntd=False)], f"f1_pace{p}.s"))
elif __name__ == "__main__":
    print(assemble([gen(stamps=True)], "f1_st.s"))
    print(assemble([gen(stamps=True, ntw=False, ntd=False)], "f1_st_pl.s"))
    print(assemble([gen(stamps=True, stA="", stH="")], "f1_st_P.s"))
    print(assemble([gen()], "f1.s"))
    print(assemble([gen(ntw=False, ntd=False)], "f1_pl.s"))
```

```python
import sys
sys.path.insert(0, "gen"); sys.path.insert(0, "bench")
from asmlib import *
import gen1
def empty(name, grid=256, block=256):
    k = K(name, grid, block, 0, vgpr=8, sgpr=16)
    k("s_endpgm")
    return k
m = lambda **kw: gen1.gen(name="main_kernel", ntw=False, ntd=False, **kw)
print(assemble([empty("ea_kernel"), m()], "l1.s"))
print(assemble([m(), empty("ea_kernel")], "l2.s"))
print(assemble([empty("ea_kernel"), empty("ea_kernel"), m()], "l3.s"))
print(assemble([m(), empty("ea_kernel"), empty("ea_kernel")], "l4.s"))
print(assemble([m(pace=(8, 3000)), empty("ea_kernel")], "l5.s"))
print(assemble([m()], "l6.s"))
for p in (0, 2, 4, 6, 8):
    print(assemble([gen1.gen(pace=(p, 3000), ntw=False, ntd=False, stamps=True)], f"f1_st_pace{p}.s"))
```

```python
import sys, struct
sys.path.insert(0, "bench")
from asmlib import *

WB = 7340032
L_W, L_X, L_D = 0, 65536, 131072
LDS = 131072 + 28672
TB = 10
TM = (1 << TB) - 1
SPIN = 30000
f2u = lambda f: struct.unpack("<I", struct.pack("<f", f))[0]
SCHED0 = {"init": "W0 X0 W1 X1 W2 X2 W3 X3", "pre": "cnt", 0: "W4 X4", 1: "W5 X5", 2: "W6 X6", 3: "W7 X7", 4: "D0 D1", 5: "D2 D3", 6: "D4 D5", 7: "D6"}

def gen(name=MAIN, ntw=False, ntd=False, stamps=False, pace=None,
        dA=0, dB=0, dC=0, sched=None, force=None, wsoff=0, slA=0, slB=0, slC=0,
        stop=None, spin=SPIN, pace2=None, canA=None, canB=None, canS=16, prerdH=True, flsl=16, agsl=16, rot=True, mA=True, mB=True, mC=True, spD=0, spstop=None, vflag=True, w0poll=1, ldA=' sc1', rlA=' sc1', stA='', n32=True, ldH=' sc1', ldC=' sc1', wb=None, wbsl=8, pst=False, wbbar=3, wbw=True, stC=' sc1', dbar=False, de=0, stH='', pipeA=False, pipeB=False, rotm=64, rotb=3, rotg=0, rotq=0, ipf=None, ldQ=' sc1', ldP=None, spQ=False, d5=None, d5sl=0, spX=None, spW2=None, spW2e=False, spA=None, spW=None, spWc=3, ldsW='', spWe=False, spC=None, ldsA=' sc1', ldsC=' sc1'):
    sched = {**SCHED0, **(sched or {})}
    WS_FL = wsoff + 65536; WS_G = WS_FL + 32768; WS_GL = WS_G + 4096; WS_H = wsoff + (1 << 20); WS_A = wsoff + (2 << 20); WS_C = wsoff + (8 << 20)
    k = K(name, 256, 320 if (wb or d5) else 256, LDS, vgpr=240, sgpr=102)
    cnt = [0]
    def st(i):
        if stamps or (pace and i == 0): k.stamp(i)
        if pace and pace[0] == i:
            cnt[0] += 1
            k(f"L_pace{cnt[0]}:\ns_memrealtime s[90:91]\ns_waitcnt lgkmcnt(0)\ns_sub_u32 s90, s90, s64\ns_cmp_lt_u32 s90, {pace[1]}\ns_cbranch_scc1 L_pace{cnt[0]}")
    def pc(pt):
        if pace2 and pt in pace2:
            cnt[0] += 1
            k(f"L_pace{cnt[0]}:\ns_memrealtime s[90:91]\ns_waitcnt lgkmcnt(0)\ns_sub_u32 s90, s90, s64\ns_cmp_lt_u32 s90, {pace2[pt]}\ns_cbranch_scc1 L_pace{cnt[0]}")
    def stp(i):
        if stop == i:
            k("s_waitcnt vmcnt(0)")
            for j in range(i + 1, 9):
                if not (pst and j in (5, 6, 7)): k.stamp(j)
            k("s_branch L_tail")
    NTW = " nt" if ntw else ""
    NTD = " nt" if ntd else ""
    sX, sG, sU, sD, sO, sW = "s[16:19]", "s[20:23]", "s[24:27]", "s[28:31]", "s[32:35]", "s[36:39]"
    sw = "s63"; sg = "s40"; sr = "s41"; skq = "s42"; sC = "s43"; sn64 = "s44"; skh = "s45"
    sT = "s46"; sF = "s47"; sE = "s48"; sit = "s49"; t0, t1, t2, t3 = "s50", "s51", "s52", "s53"
    sAst = ["s54", "s55", "s56"]; sAld = "s57"; sHld = "s58"; sCst = "s59"; sCld = "s60"; sNM = "s61"
    sXcc = "s84"; sMw = "s85"; sMx = "s86"; sOw = "s87"; sOd = "s88"; sMode = "s89"; sOx = "s62"
    vL = "v1"; vWs = "v2"; vXs = ["v3", "v4"]; vDs = "v5"; vTrW = "v6"; vT = "v7"
    vXr = [[f"v{8+2*i+p}" for p in range(2)] for i in range(4)]
    vTrD = [f"v{16+i}" for i in range(4)]
    vA = "v20"; vHs = "v21"; vHl = "v22"; vCs = "v23"; vCl = "v24"; vO = "v25"; vFl = "v26"; vFlg = "v27"
    vt = [f"v{28+i}" for i in range(10)]
    ZER = 40
    ONES = 44
    G = 48
    ACC = 64; XF = 80; WF = 112; PA = 96; WD = 128; HF = 72 if n32 else 96; ACC2 = 64; PC = 96
    NH = 14 if n32 else 7; NT = 2 if n32 else 4
    MK = ["s[4:5]", "s[6:7]", "s[8:9]", "s[10:11]", "s[12:13]", "s[82:83]", "s[92:93]"]
    sDb = "s[98:99]"; vCt = "v39"; vP = "v38"; DUM = 200
    r4 = lambda b: f"v[{b}:{b+3}]"
    r2 = lambda b: f"v[{b}:{b+1}]"
    def delay(n):
        if n: k(f"s_sleep {n}")

    k(f"""s_cmp_ge_u32 s2, 256
    s_cbranch_scc1 L_end
    s_load_dwordx8 s[4:11], s[0:1], 0
    s_load_dwordx2 s[14:15], s[0:1], 48
    s_load_dwordx4 s[96:99], s[0:1], 32""")
    if ipf:
        k(f"""s_getpc_b64 s[24:25]
    L_pc:
    s_mov_b32 s26, {'L_d5e' if d5 else 'L_end'}-L_pc
    s_mov_b32 s27, 0x00020000
    v_lshlrev_b32 v201, {ipf}, v0
    buffer_load_dword v201, v201, s[24:27], 0 offen""")
    k(f"""v_lshrrev_b32 {vt[0]}, 6, v0
    v_and_b32 {vL}, 63, v0
    s_and_b32 {sg}, s2, 7
    v_readfirstlane_b32 {sw}, {vt[0]}
    s_lshr_b32 {sr}, s2, 3
    s_and_b32 {skq}, {sr}, 3
    s_lshr_b32 {sC}, {sr}, 2
    s_mul_i32 {t0}, {sg}, 7
    s_add_u32 {sC}, {sC}, {t0}
    s_and_b32 {sn64}, {sr}, 15
    s_lshr_b32 {skh}, {sr}, 4""")
    st(0)
    k(f"""v_lshrrev_b32 {vt[0]}, 3, {vL}
    v_bfe_u32 {vt[1]}, {vL}, 1, 2
    v_bfe_u32 {vt[2]}, {vL}, 4, 1
    s_and_b32 {t0}, {sw}, 1
    s_lshl_b32 {t0}, {t0}, 1
    v_or_b32 {vt[2]}, {t0}, {vt[2]}
    v_xor_b32 {vt[1]}, {vt[1]}, {vt[2]}
    v_lshlrev_b32 {vt[1]}, 5, {vt[1]}
    v_and_b32 {vt[2]}, 1, {vL}
    v_lshl_or_b32 {vt[1]}, {vt[2]}, 4, {vt[1]}
    v_mul_u32_u24 {vWs}, 7168, {vt[0]}
    v_add_u32 {vWs}, {vWs}, {vt[1]}
    v_lshlrev_b32 {vDs}, 11, {vt[0]}
    v_add_u32 {vDs}, {vDs}, {vt[1]}
    s_lshr_b32 {t0}, {skq}, 1
    s_lshl_b32 {t0}, {t0}, 9
    s_lshl_b32 {t1}, {sw}, 3
    s_add_u32 {t0}, {t0}, {t1}
    s_mul_i32 {t0}, {t0}, 7168
    s_lshl_b32 {t2}, {sC}, 7
    s_add_u32 {t0}, {t0}, {t2}
    v_add_u32 {vWs}, {t0}, {vWs}
    s_mul_i32 {t0}, {sg}, 448
    s_mul_i32 {t2}, {skh}, 224
    s_add_u32 {t0}, {t0}, {t2}
    s_add_u32 {t0}, {t0}, {t1}
    s_lshl_b32 {t0}, {t0}, 11
    s_lshl_b32 {t2}, {sn64}, 7
    s_add_u32 {t0}, {t0}, {t2}
    v_add_u32 {vDs}, {t0}, {vDs}""")
    if n32:
        k(f"""v_lshrrev_b32 {vt[1]}, 2, {vL}
        v_bfe_u32 {vt[2]}, {vL}, 1, 1
        v_lshrrev_b32 {vt[3]}, 5, {vL}
        v_xor_b32 {vt[2]}, {vt[2]}, {vt[3]}
        v_lshlrev_b32 {vt[2]}, 5, {vt[2]}
        v_lshl_or_b32 {vt[2]}, {vt[1]}, 11, {vt[2]}
        v_and_b32 {vt[3]}, 1, {vL}
        v_lshl_or_b32 {vDs}, {vt[3]}, 4, {vt[2]}
        s_mul_i32 {t0}, {sg}, 448
        s_lshl_b32 {t2}, {sw}, 4
        s_add_u32 {t0}, {t0}, {t2}
        s_lshl_b32 {t0}, {t0}, 11
        s_lshl_b32 {t2}, {sr}, 6
        s_add_u32 {t0}, {t0}, {t2}
        v_add_u32 {vDs}, {t0}, {vDs}""")
    k(f"""v_lshrrev_b32 {vt[1]}, 4, {vL}
    v_and_b32 {vt[2]}, 7, {vL}
    v_xor_b32 {vt[1]}, {vt[1]}, {vt[2]}
    v_lshlrev_b32 {vt[1]}, 4, {vt[1]}
    v_lshl_or_b32 {vXs[0]}, {vt[0]}, 11, {vt[1]}
    s_lshl_b32 {t0}, {sw}, 15
    s_lshr_b32 {t2}, {skq}, 1
    s_lshl_b32 {t2}, {t2}, 10
    s_add_u32 {t0}, {t0}, {t2}
    v_add_u32 {vXs[0]}, {t0}, {vXs[0]}
    v_xor_b32 {vXs[1]}, 64, {vXs[0]}
    v_add_u32 {vXs[1]}, 0x4000, {vXs[1]}""")
    k(f"""s_mul_i32 {t0}, {sg}, 14
    s_lshr_b32 {t1}, {sr}, 2
    s_lshl_b32 {t1}, {t1}, 1
    s_add_u32 {t0}, {t0}, {t1}
    s_lshr_b32 {t1}, {sw}, 1
    s_add_u32 {t0}, {t0}, {t1}
    s_lshl_b32 {t0}, {t0}, 2
    s_add_u32 {t0}, {t0}, {skq}
    s_lshl_b32 {t0}, {t0}, 10
    s_and_b32 {t1}, {sw}, 1
    s_lshl_b32 {t1}, {t1}, 9
    s_add_u32 {t0}, {t0}, {t1}
    s_add_u32 {t0}, {t0}, {WS_H}
    v_and_b32 {vt[1]}, 15, {vL}
    v_lshlrev_b32 {vt[1]}, 4, {vt[1]}
    v_lshrrev_b32 {vt[2]}, 5, {vL}
    v_lshl_or_b32 {vHs}, {vt[2]}, 8, {vt[1]}
    v_add_u32 {vHs}, {t0}, {vHs}
    s_getreg_b32 {sXcc}, hwreg(HW_REG_XCC_ID)
    s_lshl_b32 {sMw}, {sw}, 10
    s_lshl_b32 {sMx}, {sw}, 11
    s_lshr_b32 {t0}, {sr}, 2
    s_mul_i32 {t1}, {sg}, {rotg}
    s_add_u32 {t0}, {t0}, {t1}
    s_and_b32 {t1}, {skq}, 1
    s_mul_i32 {t1}, {t1}, {rotq}
    s_add_u32 {t0}, {t0}, {t1}
    s_and_b32 {t0}, {t0}, {rotb}
    s_mul_i32 {sOw}, {t0}, {rotm*7168 if rot else 0}
    s_mul_i32 {sOx}, {t0}, {rotm*2 if rot else 0}
    s_mov_b32 {sMode}, 0
    s_mov_b32 {sOd}, 0
    s_and_b32 {sXcc}, {sXcc}, 7""")
    for i in range(4): k(f"v_mov_b32 v{ONES+i}, -1\nv_mov_b32 v{ZER+i}, 0")
    k(f"s_and_b32 {t0}, {skq}, 1\ns_cmp_eq_u32 {t0}, 0\ns_waitcnt lgkmcnt(0)\ns_cselect_b32 s6, s6, s8\ns_cselect_b32 s7, s7, s9")
    if pst: k.stamp(5)
    k(f"s_load_dword {sE}, s[14:15], {wsoff}" if wsoff < (1 << 20) else f"s_mov_b32 {t0}, {wsoff}\ns_load_dword {sE}, s[14:15], {t0}")
    k(f"s_lshl_b32 s101, {sg}, 7\ns_add_u32 s101, s101, {WS_GL}\ns_load_dword s100, s[14:15], s101")
    for i, (d, src, sz) in enumerate([(20, 6, WB), (16, 4, 131072), (36, 14, 1 << 28), (28, 10, WB), (32, 96, 131072)]):
        k(f"s_mov_b32 s{d}, s{src}\ns_mov_b32 s{d+1}, s{src+1}\ns_mov_b32 s{d+2}, {sz}\ns_mov_b32 s{d+3}, 0x00020000")
    if wb: k(f"s_cmp_eq_u32 {sw}, 4\ns_cbranch_scc1 L_wb")
    if d5: k(f"s_cmp_eq_u32 {sw}, 4\ns_cbranch_scc1 L_d5")
    k(f"s_cmp_ge_u32 {sr}, 28\ns_cbranch_scc1 L_spare")
    ops = []
    def vm(tag, text):
        ops.append(tag); k(text)
    def wait(tags, extra=""):
        idx = max(i for i, t in enumerate(ops) if t in tags)
        k(f"s_waitcnt vmcnt({len(ops)-1-idx}){extra}")
    lastW = [-1]; lastD = [-1]; lastX = [-1]
    def epoch():
        k(f"""s_add_u32 {sF}, {sE}, 0x1e3779b9
        s_lshl_b32 {sF}, {sF}, 4
        s_or_b32 {sF}, {sF}, {sXcc}
        s_add_u32 {sT}, {sE}, 0x29a
        s_and_b32 {sT}, {sT}, {TM & ~1}
        s_or_b32 {sT}, {sT}, 1
        v_mov_b32 {vT}, {sT}""")
    def flagstore(counted):
        if counted: ops.append("flagst")
        k(f"""s_lshl_b32 {t0}, {sg}, 5
        s_add_u32 {t0}, {t0}, {sr}
        s_lshl_b32 {t0}, {t0}, 7
        s_add_u32 {t0}, {t0}, {WS_FL}
        s_cmp_eq_u32 {sw}, 0
        s_cselect_b32 {t0}, {t0}, 0x7ffffff0
        v_mov_b32 {vt[4]}, {t0}
        v_mov_b32 {vt[5]}, {sF}
        s_mov_b64 exec, 1
        buffer_store_dword {vt[5]}, {vt[4]}, {sW}, 0 offen sc1
        s_mov_b64 exec, -1""")
    def cntadd(lab):
        if vflag:
            if lab == "a": ops.append("vf")
            k(f"""s_lshl_b32 {t0}, {sr}, 2
            s_add_u32 {t0}, s101, {t0}
            s_cmp_eq_u32 {sw}, 0
            s_cselect_b32 {t0}, {t0}, 0x7ffffff0
            v_mov_b32 {vt[4]}, {t0}
            v_mov_b32 {vt[5]}, {sF}
            s_mov_b64 exec, 1
            buffer_store_dword {vt[5]}, {vt[4]}, {sW}, 0 offen
            s_mov_b64 exec, -1""")
            return
        k(f"""s_cmp_lg_u32 {sw}, 0
        s_cbranch_scc1 L_cnt{lab}
        s_lshl_b32 {t0}, {sr}, 2
        s_add_u32 s101, s101, {t0}
        s_mov_b32 s100, {sF}
        s_atomic_swap s100, s[14:15], s101
        L_cnt{lab}:""")
    def op(o):
        if o[0] == "W" and o[1:].isdigit():
            s = int(o[1:]); assert s == lastW[0] + 1; lastW[0] = s
            for mat in range(2):
                k(f"s_add_u32 m0, {sMw}, {L_W + 8192*s + 4096*mat}")
                if mat == 1 or s > 0:
                    k(f"s_add_u32 {sOw}, {sOw}, {32*7168}")
                    if rot and mat == 0: k(f"s_cmp_eq_u32 {sOw}, {512*7168}\ns_cselect_b32 {sOw}, 0, {sOw}")
                else: k("s_nop 0")
                vm(o, f"buffer_load_dwordx4 {vWs}, {sG}, {sOw} offen{NTW} lds")
        elif o[0] == "X":
            j = int(o[1:]); assert j == lastX[0] + 1; lastX[0] = j
            for n in range(2):
                k(f"s_add_u32 m0, {sMx}, {L_X + 1024*n + j*8192}")
                if n == 0 and j > 0: k(f"s_add_u32 {sOx}, {sOx}, 128\ns_and_b32 {sOx}, {sOx}, 1023")
                else: k("s_nop 0")
                vm(o, f"buffer_load_dwordx4 {vXs[n]}, {sX}, {sOx} offen lds")
        elif o[0] == "D":
            s = int(o[1:]); assert s == lastD[0] + 1; lastD[0] = s
            k(f"s_add_u32 m0, {sMw}, {L_D + 4096*s}")
            if s > 0: k(f"s_add_u32 {sOd}, {sOd}, {(64 if n32 else 32)*2048}")
            else: k("s_nop 0")
            vm(o, f"buffer_load_dwordx4 {vDs}, {sD}, {sOd} offen{NTD} lds")
        elif o == "cnt":
            epoch(); cntadd("a")
        elif o == "P":
            k("s_mov_b64 exec, 0xffffff")
            vm(o, f"buffer_load_dword v{DUM}, {vP}, {sW}, {sAld} offen{ldA if ldP is None else ldP}")
            k("s_mov_b64 exec, -1")
        elif o == "Q":
            vm(o, f"buffer_load_dword v{DUM+2}, {vCl}, {sW}, {sCld} offen{ldQ}")
            k(f"s_add_u32 {t3}, {sCld}, 4096")
            vm(o, f"buffer_load_dword v{DUM+3}, {vCl}, {sW}, {t3} offen{ldQ}")
        else: raise Exception(o)
    covered = set()
    for n_, o in enumerate(sched["init"].split()):
        op(o)
        if pst and n_ == 0: k.stamp(6)
    if pst: k.stamp(7)
    def common_addr():
        k(f"""v_lshrrev_b32 {vt[0]}, 4, {vL}
        v_bfe_u32 {vt[1]}, {vL}, 2, 2
        v_lshl_or_b32 {vt[1]}, {vt[0]}, 3, {vt[1]}
        v_lshlrev_b32 {vt[1]}, 7, {vt[1]}
        v_and_b32 {vt[2]}, 3, {vL}
        v_lshl_or_b32 {vt[1]}, {vt[2]}, 3, {vt[1]}
        v_bfe_u32 {vt[2]}, {vL}, 3, 2""")
        k(f"v_xor_b32 {vt[3]}, {sw}, {vt[2]}\nv_lshl_or_b32 {vTrW}, {vt[3]}, 5, {vt[1]}")
        if n32:
            k(f"""v_bfe_u32 {vt[1]}, {vL}, 2, 2
            v_lshl_or_b32 {vt[1]}, {vt[0]}, 3, {vt[1]}
            v_lshlrev_b32 {vt[1]}, 6, {vt[1]}
            v_and_b32 {vt[2]}, 3, {vL}
            v_lshl_or_b32 {vt[1]}, {vt[2]}, 3, {vt[1]}
            v_add_u32 {vt[1]}, {L_D}, {vt[1]}
            v_and_b32 {vt[2]}, 1, {vt[0]}
            v_lshl_or_b32 {vTrD[0]}, {vt[2]}, 5, {vt[1]}
            v_xor_b32 {vTrD[1]}, 32, {vTrD[0]}
            v_lshlrev_b32 {vHl}, 4, {vL}
            s_mul_i32 {t0}, {sg}, 56
            s_add_u32 {t0}, {t0}, {sw}
            s_lshl_b32 {t0}, {t0}, 10
            s_add_u32 {sHld}, {t0}, {WS_H}
            v_bfe_u32 {vt[1]}, {vL}, 3, 1
            v_lshlrev_b32 {vt[1]}, 13, {vt[1]}
            v_lshl_or_b32 {vt[1]}, {vt[0]}, 7, {vt[1]}
            v_and_b32 {vt[2]}, 7, {vL}
            v_lshl_or_b32 {vCs}, {vt[2]}, 4, {vt[1]}
            s_lshl_b32 {t0}, {sr}, 2
            s_add_u32 {t0}, {t0}, {sw}
            s_lshl_b32 {t0}, {t0}, 4
            s_add_u32 {t0}, {t0}, {sg}
            s_lshl_b32 {t0}, {t0}, 10
            s_add_u32 {sCst}, {t0}, {WS_C}
            s_lshl_b32 {t0}, {sr}, 3
            s_add_u32 {t0}, {t0}, {sg}
            s_lshl_b32 {t0}, {t0}, 13
            s_lshl_b32 {t1}, {sw}, 8
            s_add_u32 {t0}, {t0}, {t1}
            s_add_u32 {sCld}, {t0}, {WS_C}
            v_and_b32 {vt[1]}, 15, {vL}
            v_lshlrev_b32 {vt[1]}, 4, {vt[1]}
            v_lshl_or_b32 {vCl}, {vt[0]}, 10, {vt[1]}
            v_bfe_u32 {vt[1]}, {vL}, 3, 1
            v_lshlrev_b32 {vt[1]}, 3, {vt[1]}
            v_lshl_or_b32 {vt[1]}, {vt[0]}, 1, {vt[1]}
            v_lshl_or_b32 {vO}, {vt[2]}, 11, {vt[1]}
            s_lshl_b32 {t0}, {sg}, 14
            s_lshl_b32 {t1}, {sr}, 6
            s_add_u32 {t0}, {t0}, {t1}
            s_lshl_b32 {t1}, {sw}, 4
            s_add_u32 {t0}, {t0}, {t1}
            v_add_u32 {vO}, {t0}, {vO}""")
        else: common16()
        common_tail()
    def common16():
        k(f"v_add_u32 {vt[1]}, {L_D}, {vt[1]}")
        for nt in range(4):
            k(f"v_xor_b32 {vt[3]}, {nt}, {vt[2]}\nv_lshl_or_b32 {vTrD[nt]}, {vt[3]}, 5, {vt[1]}")
        k(f"""v_lshlrev_b32 {vHl}, 4, {vL}
        s_mul_i32 {t0}, {sg}, 14
        s_mul_i32 {t1}, {skh}, 7
        s_add_u32 {t0}, {t0}, {t1}
        s_lshl_b32 {t0}, {t0}, 2
        s_add_u32 {t0}, {t0}, {sw}
        s_lshl_b32 {t0}, {t0}, 10
        s_add_u32 {sHld}, {t0}, {WS_H}""")
        k(f"""v_bfe_u32 {vt[1]}, {vL}, 2, 2
        v_lshlrev_b32 {vt[1]}, 14, {vt[1]}
        v_lshl_or_b32 {vt[1]}, {vt[0]}, 6, {vt[1]}
        v_and_b32 {vt[2]}, 3, {vL}
        v_lshl_or_b32 {vCs}, {vt[2]}, 4, {vt[1]}
        s_lshl_b32 {t0}, {sg}, 1
        s_add_u32 {t0}, {t0}, {skh}
        s_lshl_b32 {t1}, {sn64}, 4
        s_lshl_b32 {t2}, {sw}, 2
        s_add_u32 {t2}, {t2}, {t1}
        s_lshl_b32 {t2}, {t2}, 4
        s_add_u32 {t2}, {t2}, {t0}
        s_lshl_b32 {t2}, {t2}, 10
        s_add_u32 {sCst}, {t2}, {WS_C}""")
        k(f"""s_add_u32 {t1}, {t1}, {t0}
        s_lshl_b32 {t1}, {t1}, 14
        s_lshl_b32 {t2}, {sw}, 8
        s_add_u32 {t1}, {t1}, {t2}
        s_add_u32 {sCld}, {t1}, {WS_C}
        v_and_b32 {vt[1]}, 15, {vL}
        v_lshlrev_b32 {vt[1]}, 4, {vt[1]}
        v_lshl_or_b32 {vCl}, {vt[0]}, 10, {vt[1]}""")
        k(f"""v_bfe_u32 {vt[1]}, {vL}, 2, 2
        v_lshlrev_b32 {vt[1]}, 3, {vt[1]}
        v_lshl_or_b32 {vt[1]}, {vt[0]}, 1, {vt[1]}
        v_lshl_or_b32 {vO}, {vt[2]}, 11, {vt[1]}
        s_lshl_b32 {t0}, {t0}, 13
        s_lshl_b32 {t1}, {sn64}, 7
        s_add_u32 {t0}, {t0}, {t1}
        s_lshl_b32 {t1}, {sw}, 5
        s_add_u32 {t0}, {t0}, {t1}
        v_add_u32 {vO}, {t0}, {vO}""")
    def common_tail():
        k(f"""s_lshl_b32 {t0}, {sg}, 7
        s_add_u32 {t0}, {t0}, {WS_G}
        v_mov_b32 {vFl}, {t0}
        s_mov_b32 {sNM}, {(~TM) & 0xffffffff}
        v_and_b32 {vCt}, 31, {vL}
        s_add_u32 {t0}, {t0}, 4096
        v_lshl_add_u32 {vCt}, {vCt}, 2, {t0}""")
    common_addr()
    k(f"""v_lshrrev_b32 {vt[0]}, 4, {vL}
    v_bfe_u32 {vt[1]}, {vL}, 1, 3
    v_xor_b32 {vt[0]}, {vt[0]}, {vt[1]}
    v_lshlrev_b32 {vt[0]}, 4, {vt[0]}
    v_and_b32 {vt[1]}, 15, {vL}
    v_lshl_or_b32 {vt[0]}, {vt[1]}, 7, {vt[0]}""")
    for i in range(4):
        k(f"""s_xor_b32 {t0}, {skq}, {i}
        s_lshl_b32 {t0}, {t0}, 11
        s_add_u32 {t0}, {t0}, {L_X}
        v_add_u32 {vXr[i][0]}, {t0}, {vt[0]}
        v_xor_b32 {vXr[i][1]}, 64, {vXr[i][0]}""")
    k(f"""v_lshlrev_b32 {vA}, 4, {vL}
    s_lshl_b32 {t0}, {sw}, 10
    v_add_u32 {vA}, {t0}, {vA}
    s_lshl_b32 {t0}, {sC}, 2""")
    for i in range(1, 4):
        k(f"""s_xor_b32 {t1}, {skq}, {i}
        s_add_u32 {t1}, {t1}, {t0}
        s_mul_i32 {t1}, {t1}, 12288
        s_add_u32 {sAst[i-1]}, {t1}, {WS_A + (i-1)*4096}""")
    k(f"s_add_u32 {t1}, {t0}, {skq}\ns_mul_i32 {t1}, {t1}, 12288\ns_add_u32 {sAld}, {t1}, {WS_A}")
    k(f"""v_lshrrev_b32 {vt[0]}, 3, {vL}
    v_lshlrev_b32 {vt[0]}, 12, {vt[0]}
    v_and_b32 {vt[1]}, 7, {vL}
    v_lshl_or_b32 {vP}, {vt[1]}, 7, {vt[0]}
    s_lshl_b32 {t0}, {sw}, 10
    v_add_u32 {vP}, {t0}, {vP}""")
    if sched.get("pre"):
        k("s_waitcnt lgkmcnt(0)")
        for o in sched["pre"].split(): op(o)
    def dreads(c0, c1):
        q = NH // 7
        for s in range(q*c0, q*c1):
            for nt in range(NT):
                for hh in range(2):
                    k(f"ds_read_b64_tr_b16 {r2(WD+4*NT*s+4*nt+2*hh)}, {vTrD[nt]} offset:{1024*NT*s+128*NT*hh}")
    def xreads(s):
        for p in range(2):
            for i in (1, 2, 3, 0):
                k(f"ds_read_b128 {r4(XF+16*p+4*i)}, {vXr[i][p]} offset:{8192*s}")
    for s in range(8):
        early = f"X{s}" in covered
        if early: xreads(s)
        tags = [f"W{s}", f"X{s}"]
        idx = max(i for i, t in enumerate(ops) if t in tags)
        covered.update(ops[:idx+1])
        wait(tags)
        k("s_barrier")
        if s == 0: st(1)
        for mat in range(2):
            for hh in range(2):
                k(f"ds_read_b64_tr_b16 {r2(WF+4*mat+2*hh)}, {vTrW} offset:{8192*s+4096*mat+512*hh}")
        if not early: xreads(s)
        lst = sched[s].split()
        if "flag" in lst:
            assert s > 0
        for o in lst: op(o)
        k("s_waitcnt lgkmcnt(0)")
        for p in range(2):
            for i in (1, 2, 3, 0):
                a = ACC + 4*i
                k(f"v_mfma_f32_16x16x32_bf16 {r4(a)}, {r4(WF+4*p)}, {r4(XF+16*p+4*i)}, {'0' if s == 0 and p == 0 else r4(a)}")
    st(2)
    stp(2)
    def astores(mod, tag):
        for i in range(1, 4):
            a = ACC + 4*i
            if tag:
                for r in range(4):
                    k(f"v_and_or_b32 v{a+r}, v{a+r}, {sNM}, {vT}")
            k(f"buffer_store_dwordx4 {r4(a)}, {vA}, {sW}, {sAst[i-1]} offen{mod}")
    k("s_nop 5")
    astores(stA, True)
    pc("A")
    delay(dA)
    def tagcheck(base, n, regs=None):
        regs = regs or [base + j for j in range(n)]
        k(f"v_xor_b32 {vt[0]}, {vT}, v{regs[0]}")
        for j in regs[1:]:
            k(f"v_bitop3_b32 {vt[0]}, {vt[0]}, v{j}, {vT} bitop3:0xf6")
        k(f"v_and_b32 {vt[0]}, {TM}, {vt[0]}\nv_cmp_ne_u32 vcc, 0, {vt[0]}")
    ALL = None
    def aloads(parts, mod=None):
        for i in range(3):
            k(f"s_add_u32 {t0}, {sAld}, {4096*i}")
            k(f"buffer_load_dwordx4 {r4(PA+4*i)}, {vA}, {sW}, {t0} offen{mod or ldA}")
    def gcheck(b, m):
        k(f"v_xor_b32 {vt[0]}, {vT}, v{b}")
        for j in range(1, 4): k(f"v_bitop3_b32 {vt[0]}, {vt[0]}, v{b+j}, {vT} bitop3:0xf6")
        k(f"v_and_b32 {vt[0]}, {TM}, {vt[0]}\nv_cmp_ne_u32 {m}, 0, {vt[0]}")
    def orall(n):
        k(f"s_or_b64 vcc, {MK[0]}, {MK[1]}")
        for j in range(2, n): k(f"s_or_b64 vcc, vcc, {MK[j]}")
    cload = f"buffer_load_dword {vFlg}, {vCt}, {sW}, 0 offen sc1"
    k(f"s_mov_b32 {sit}, {spin}")
    aloads(ALL)
    k(cload)
    n0 = len(ops)
    for o in sched.get("A1", "").split(): op(o)
    if de:
        idx = ops.index(f"D{de-1}"); assert idx < n0
        k(f"s_waitcnt vmcnt({len(ops) - 1 - idx + 7})\ns_barrier")
        dreads(0, de)
    k(f"s_waitcnt vmcnt({len(ops) - n0})\nL_hopA_chk:")
    if force != "slow": k(f"v_cmp_ne_u32 vcc, {sF}, {vFlg}\ns_cbranch_vccz L_hopA_c2")
    k(f"s_cmp_lg_u32 {sMode}, 0\ns_cbranch_scc1 L_hopA_c2\ns_mov_b32 {sMode}, 1")
    astores(" sc1", False)
    flagstore(False)
    k("L_hopA_c2:")
    if mA:
        for j in range(3): gcheck(PA + 4*j, MK[j])
        orall(3)
        k("s_cbranch_scc0 L_hopA_done")
        delay(slA)
        def arel():
            for j in range(3):
                k(f"s_add_u32 {t0}, {sAld}, {4096*j}")
                k(f"s_mov_b64 exec, {MK[j]}\nbuffer_load_dwordx4 {r4(PA+4*j)}, {vA}, {sW}, {t0} offen{rlA}")
            k("s_mov_b64 exec, -1")
        if pipeA:
            k(f"s_cmp_lg_u32 {sit}, {spin}\ns_cbranch_scc1 L_hopA_p")
            arel(); k(cload)
            k(f"s_sleep {pipeA - 1}\nL_hopA_p:")
        arel()
    else:
        tagcheck(PA, 12)
        k("s_cbranch_vccz L_hopA_done")
        delay(slA)
        aloads(ALL, rlA)
    k(cload)
    k(f"""s_sub_u32 {sit}, {sit}, 1
    s_cmp_lg_u32 {sit}, 0
    s_waitcnt vmcnt({4 if pipeA else 0})
    s_cbranch_scc1 L_hopA_chk
    L_hopA_done:""")
    for o in sched.get("A2", "").split(): op(o)
    if dbar: k("s_waitcnt vmcnt(0)\ns_barrier")
    st(3)
    stp(3)
    g, u = ACC, ACC + 4
    for r in range(4):
        k(f"v_add_f32 v{g+r}, v{g+r}, v{PA+4+r}")
        k(f"v_add_f32 v{u+r}, v{PA+r}, v{PA+8+r}")
    k(f"s_bitcmp1_b32 {skq}, 0\ns_cbranch_scc0 L_nswap")
    for r in range(4): k(f"v_swap_b32 v{g+r}, v{u+r}")
    k("L_nswap:")
    c1 = -2.0 * 1.4426950408889634 * 0.7978845608028654
    c2 = c1 * 0.044715
    k(f"""v_cvt_pk_bf16_f32 v{G}, v{g}, v{g+1}
    v_cvt_pk_bf16_f32 v{G+1}, v{g+2}, v{g+3}
    v_cvt_pk_bf16_f32 v{G+2}, v{u}, v{u+1}
    v_cvt_pk_bf16_f32 v{G+3}, v{u+2}, v{u+3}
    s_mov_b32 {t0}, 0xffff0000
    s_mov_b32 {t1}, {f2u(c2):#x}
    v_mov_b32 {vt[1]}, {f2u(c1):#x}
    v_lshlrev_b32 v{g}, 16, v{G}
    v_and_b32 v{g+1}, {t0}, v{G}
    v_lshlrev_b32 v{g+2}, 16, v{G+1}
    v_and_b32 v{g+3}, {t0}, v{G+1}""")
    for r in range(4): k(f"v_mul_f32 v{G+4+r}, v{g+r}, v{g+r}")
    for r in range(4): k(f"v_fma_f32 v{G+4+r}, v{G+4+r}, {t1}, {vt[1]}")
    for r in range(4): k(f"v_mul_f32 v{G+4+r}, v{G+4+r}, v{g+r}")
    for r in range(4): k(f"v_exp_f32 v{G+4+r}, v{G+4+r}")
    k(f"""v_lshlrev_b32 v{u}, 16, v{G+2}
    v_and_b32 v{u+1}, {t0}, v{G+2}
    v_lshlrev_b32 v{u+2}, 16, v{G+3}
    v_and_b32 v{u+3}, {t0}, v{G+3}""")
    for r in range(4): k(f"v_add_f32 v{G+4+r}, 1.0, v{G+4+r}")
    for r in range(4): k(f"v_rcp_f32 v{G+4+r}, v{G+4+r}")
    k("s_nop 0")
    for r in range(4): k(f"v_mul_f32 v{G+4+r}, v{G+4+r}, v{g+r}")
    k(f"""v_cvt_pk_bf16_f32 v{G}, v{G+4}, v{G+5}
    v_cvt_pk_bf16_f32 v{G+1}, v{G+6}, v{G+7}
    v_cmp_ne_u32 vcc, {sF}, {vFlg}
    v_lshlrev_b32 v{G+4}, 16, v{G}
    v_and_b32 v{G+5}, {t0}, v{G}
    v_lshlrev_b32 v{G+6}, 16, v{G+1}
    v_and_b32 v{G+7}, {t0}, v{G+1}""")
    for r in range(4): k(f"v_mul_f32 v{G+4+r}, v{G+4+r}, v{u+r}")
    k(f"""v_cvt_pk_bf16_f32 v{G+8}, v{G+4}, v{G+5}
    v_cvt_pk_bf16_f32 v{G+9}, v{G+6}, v{G+7}
    v_min_u32 v{G+8}, -2, v{G+8}
    s_nop 1
    v_permlane16_swap_b32 v{G+8}, v{G+10}
    v_permlane16_swap_b32 v{G+9}, v{G+11}
    s_mov_b32 exec_lo, 0xffff
    s_mov_b32 exec_hi, 0xffff""")
    if force != "slow":
        k("s_cbranch_vccz L_hfast")
    k(f"""s_mov_b64 exec, -1
    s_mov_b32 {sit}, {spin}
    L_hfl:
    buffer_load_dword {vFlg}, {vFl}, {sW}, 0 offen sc1
    s_waitcnt vmcnt(0)
    v_xor_b32 {vFlg}, {sF}, {vFlg}
    v_cmp_lt_u32 vcc, 15, {vFlg}
    s_cbranch_vccz L_hfl_done
    s_sleep 2
    s_sub_u32 {sit}, {sit}, 1
    s_cmp_lg_u32 {sit}, 0
    s_cbranch_scc1 L_hfl
    L_hfl_done:
    s_mov_b32 exec_lo, 0xffff
    s_mov_b32 exec_hi, 0xffff
    buffer_store_dwordx4 {r4(G+8)}, {vHs}, {sW}, 0 offen sc1
    s_mov_b64 exec, -1""")
    st(4)
    k(f"""s_branch L_p2
    L_hfast:
    buffer_store_dwordx4 {r4(G+8)}, {vHs}, {sW}, 0 offen{stH}
    s_mov_b64 exec, -1""")
    st(4)
    stp(4)
    k("s_branch L_p2")
    k("L_spare:")
    ops.clear(); lastD[0] = -1
    def spWblk():
        s0, n = spW
        k(f"""s_cmp_lt_u32 {sw}, 2
        s_cbranch_scc1 L_spW_skip
        s_add_u32 {t0}, {sg}, {spWc}
        s_and_b32 {t0}, {t0}, 7
        s_cmp_eq_u32 {t0}, 7
        s_cbranch_scc1 L_spW_skip
        s_mul_i32 {t1}, {sg}, 7
        s_add_u32 {t1}, {t1}, {t0}
        s_lshl_b32 {t1}, {t1}, 7
        s_lshr_b32 {t2}, {skq}, 1
        s_mul_i32 {t2}, {t2}, {512*7168}
        s_add_u32 {t1}, {t1}, {t2}
        s_and_b32 {t0}, {t0}, {rotb}
        s_sub_u32 {t2}, {sw}, 2
        s_mul_i32 {t2}, {t2}, {n}
        s_add_u32 {t0}, {t0}, {t2}
        s_add_u32 {t0}, {t0}, {s0}
        v_mul_u32_u24 {vt[7]}, 7168, {vL}""")
        for j in range(n):
            k(f"""s_and_b32 {t0}, {t0}, 7
            s_mul_i32 {t2}, {t0}, {64*7168}
            s_add_u32 {t2}, {t2}, {t1}
            buffer_load_dword v{DUM+12+j}, {vt[7]}, {sG}, {t2} offen{ldsW}
            s_add_u32 {t0}, {t0}, 1""")
        k("L_spW_skip:")
    def spXblk():
        k(f"""s_cmp_ge_u32 {sw}, 2
        s_cbranch_scc1 L_spX_skip
        s_sub_u32 {t0}, {sr}, 28
        s_lshl_b32 {t0}, {t0}, 1
        s_add_u32 {t0}, {t0}, {sw}
        s_and_b32 {t1}, {t0}, 3
        s_lshr_b32 {t0}, {t0}, 2
        s_lshl_b32 {t0}, {t0}, 3
        s_add_u32 {t0}, {t0}, {t1}
        s_add_u32 {t0}, {t0}, 4
        s_lshl_b32 {t0}, {t0}, 7
        v_lshlrev_b32 {vt[7]}, 11, {vL}
        buffer_load_dword v{DUM+16}, {vt[7]}, {sX}, {t0} offen
        L_spX_skip:""")
    def spW2blk():
        assert rotb == 0
        k(f"""s_cmp_lt_u32 {sw}, 2
        s_cbranch_scc1 L_spW2_skip
        s_sub_u32 {t0}, {sw}, 2
        s_mul_i32 {t0}, {t0}, 3
        s_mul_i32 {t1}, {sg}, 7
        s_add_u32 {t1}, {t1}, {t0}
        s_lshl_b32 {t1}, {t1}, 7
        s_lshr_b32 {t2}, {skq}, 1
        s_mul_i32 {t2}, {t2}, {512*7168}
        s_add_u32 {t1}, {t1}, {t2}
        s_add_u32 {t1}, {t1}, {spW2*64*7168}
        v_mul_u32_u24 {vt[7]}, 7168, {vL}""")
        for j in range(4):
            k(f"buffer_load_dword v{DUM+17+j}, {vt[7]}, {sG}, {t1} offen offset:{128*j}")
        k("L_spW2_skip:")
    if spX: spXblk()
    if spW and spWe: spWblk()
    if spW2 and spW2e: spW2blk()
    k(f"""s_sub_u32 {t0}, {sr}, 28
    s_lshl_b32 {t0}, {t0}, 2
    s_add_u32 {t0}, {t0}, {sw}
    s_mul_i32 {t1}, {sg}, 14
    s_add_u32 {t1}, {t1}, {t0}
    s_lshl_b32 {t1}, {t1}, 12
    s_add_u32 {t1}, {t1}, {WS_H}
    s_cmp_lt_u32 {t0}, 14
    s_cselect_b32 {t1}, {t1}, 0x7fffe000
    v_lshlrev_b32 {vt[6]}, 4, {vL}
    v_add_u32 {vt[6]}, {t1}, {vt[6]}""")
    for j in range(4):
        k(f"buffer_store_dwordx4 {r4(ONES)}, {vt[6]}, {sW}, 0 offen offset:{1024*j} sc1")
    common_addr()
    k("s_waitcnt lgkmcnt(0)")
    epoch()
    k(f"s_waitcnt vmcnt(0)\ns_barrier")
    cntadd("b")
    flagstore(False)
    st(1)
    if spW and not spWe: spWblk()
    if spW2 and not spW2e: spW2blk()
    if spA is not None:
        k(f"""s_cmp_lt_u32 {sw}, 2
        s_cbranch_scc1 L_spA_skip
        {f"s_sleep {spA}" if spA else ""}
        s_sub_u32 {t0}, {sr}, 28
        s_lshl_b32 {t0}, {t0}, 1
        s_add_u32 {t0}, {t0}, {sw}
        s_sub_u32 {t0}, {t0}, 2
        s_mul_i32 {t0}, {t0}, 43008
        s_mul_i32 {t1}, {sg}, 344064
        s_add_u32 {t0}, {t0}, {t1}
        s_add_u32 {t0}, {t0}, {WS_A}
        v_lshlrev_b32 {vt[7]}, 7, {vL}
        s_mov_b32 exec_hi, 0xffffff""")
        for j in range(6):
            k(f"buffer_load_dword v{DUM+4+j}, {vt[7]}, {sW}, {t0} offen{ldsA}")
            if j < 5: k(f"s_add_u32 {t0}, {t0}, 7168")
        k("s_mov_b64 exec, -1\nL_spA_skip:")
    def sps(i):
        if spstop == i:
            k("s_waitcnt vmcnt(0) lgkmcnt(0)")
            for j in range(i + 1, 9):
                if not (pst and j == 5): k.stamp(j)
            k("s_branch L_tail")
    sps(1)
    def pollrole(lab, cond, nl, base, sl, fin):
        k(f"""{cond}
        s_cmp_lg_u32 {sw}, 0
        s_cbranch_scc1 {lab}_skip
        s_mov_b32 {sit}, {spin}
        v_lshlrev_b32 {vt[0]}, 7, {vL}
        {base}
        s_mov_b32 exec_lo, {(1 << nl) - 1}
        s_mov_b32 exec_hi, 0
        {lab}:
        s_sleep {sl}
        buffer_load_dword {vt[1]}, {vt[0]}, {sW}, {t0} offen sc1
        {cload if lab == "L_agg" else ""}
        s_waitcnt vmcnt(0)
        {f"v_cmp_ne_u32 vcc, {sF}, {vFlg}" if lab == "L_agg" and force != "slow" else ""}
        {f"s_cbranch_vccz {lab}_done" if lab == "L_agg" and force != "slow" else ""}
        v_xor_b32 {vt[1]}, {sF}, {vt[1]}
        v_cmp_lt_u32 vcc, 15, {vt[1]}
        s_cbranch_vccz {lab}_done
        s_sub_u32 {sit}, {sit}, 1
        s_cmp_lg_u32 {sit}, 0
        s_cbranch_scc1 {lab}
        {lab}_done:
        {fin}
        s_mov_b64 exec, 1
        buffer_store_dword {vt[1]}, {vt[2]}, {sW}, 0 offen sc1
        s_mov_b64 exec, -1
        {lab}_skip:""")
    pollrole("L_agg", f"s_cmp_lg_u32 {sr}, 28\ns_cbranch_scc1 L_agg_skip", 32,
             f"s_lshl_b32 {t0}, {sg}, 12\ns_add_u32 {t0}, {t0}, {WS_FL}", agsl,
             f"""v_mov_b32 {vt[1]}, {sF}
             v_mov_b32 {vt[2]}, {vFl}""")
    pollrole("L_upd", "s_cmp_lg_u32 s2, 232\ns_cbranch_scc1 L_upd_skip", 8, f"s_mov_b32 {t0}, {WS_G}", 8,
             f"""s_add_u32 {t1}, {sE}, 2
             v_mov_b32 {vt[1]}, {t1}
             v_mov_b32 {vt[2]}, {wsoff}""")
    st(2)
    sps(2)
    if w0poll: k(f"s_cmp_lg_u32 {sw}, {w0poll}\ns_cbranch_scc1 L_fl_skip")
    k(f"""s_mov_b32 {sit}, {spin}
    L_fl:
    s_sleep {flsl}
    {f"buffer_load_dword {vt[8]}, {vCt}, {sW}, 0 offen sc1" if force != "slow" else ""}
    buffer_load_dword {vFlg}, {vFl}, {sW}, 0 offen sc1
    s_waitcnt vmcnt(0)
    {f"v_cmp_ne_u32 vcc, {sF}, {vt[8]}" if force != "slow" else ""}
    {"s_cbranch_vccz L_fl_done" if force != "slow" else ""}
    v_xor_b32 {vFlg}, {sF}, {vFlg}
    v_cmp_lt_u32 vcc, 15, {vFlg}
    s_cbranch_vccz L_fl_done
    s_sub_u32 {sit}, {sit}, 1
    s_cmp_lg_u32 {sit}, 0
    s_cbranch_scc1 L_fl
    L_fl_done:""")
    if w0poll: k("L_fl_skip:\ns_barrier")
    st(3)
    sps(3)
    if prerdH:
        for j in range(4):
            k(f"buffer_load_dwordx4 {r4(160+4*j)}, {vt[6]}, {sW}, 0 offen offset:{1024*j} sc1")
    if spD: k(f"s_sleep {spD}")
    if spQ: op("Q")
    for s in range(7): op(f"D{s}")
    if de or dbar:
        k(f"s_waitcnt vmcnt({0 if dbar else 7 - de})\ns_barrier")
        dreads(0, de)
    if spC is not None:
        k(f"""{f"s_sleep {spC}" if spC else ""}
        s_sub_u32 {t0}, s2, 224
        s_lshl_b32 {t0}, {t0}, 2
        s_add_u32 {t0}, {t0}, {sw}
        s_lshl_b32 {t0}, {t0}, 14
        s_add_u32 {t0}, {t0}, {WS_C}
        v_lshlrev_b32 {vt[7]}, 7, {vL}
        buffer_load_dword v{DUM+10}, {vt[7]}, {sW}, {t0} offen{ldsC}
        s_add_u32 {t0}, {t0}, 8192
        buffer_load_dword v{DUM+11}, {vt[7]}, {sW}, {t0} offen{ldsC}""")
    st(4)
    sps(4)
    def hloads(ss=range(NH), mod=" sc1"):
        for s in ss:
            k(f"s_add_u32 {t0}, {sHld}, {4096*s}\nbuffer_load_dwordx4 {r4(HF+4*s)}, {vHl}, {sW}, {t0} offen{mod}")
    def hcheck():
        k(f"""v_max3_u32 {vt[0]}, v{HF}, v{HF+4}, v{HF+8}
        v_max3_u32 {vt[1]}, v{HF+12}, v{HF+16}, v{HF+20}
        v_max3_u32 {vt[0]}, {vt[0]}, {vt[1]}, v{HF+24}
        v_cmp_eq_u32 vcc, -1, {vt[0]}""")
    if canS is not None:
        k(f"""s_mov_b32 {sit}, {spin}
        s_mov_b64 exec, 1
        L_canS:
        s_sleep {canS}""")
        hloads([6])
        k(f"""s_waitcnt vmcnt(0)
        v_cmp_eq_u32 vcc, -1, v{HF+24}
        s_cbranch_vccz L_canS_done
        s_sub_u32 {sit}, {sit}, 1
        s_cmp_lg_u32 {sit}, 0
        s_cbranch_scc1 L_canS
        L_canS_done:
        s_mov_b64 exec, -1""")
    k("L_p2:")
    delay(dB)
    hloads(mod=ldH)
    if dbar: dreads(de, 7)
    elif de < 7:
        if sched.get("A1") or sched.get("A2"): k(f"s_waitcnt vmcnt({NH})")
        k("s_barrier")
        dreads(de, 7)
    q = NH // 7
    def bmask():
        for j in range(7):
            if q == 1: k(f"v_cmp_eq_u32 {MK[j]}, -1, v{HF+4*j}")
            else: k(f"v_max_u32 {vt[j]}, v{HF+8*j}, v{HF+8*j+4}\nv_cmp_eq_u32 {MK[j]}, -1, {vt[j]}")
        orall(7)
        k("s_cbranch_scc0 L_hopB_done")
    def breload():
        for j in range(7):
            k(f"s_mov_b64 exec, {MK[j]}")
            hloads(range(q*j, q*j+q))
        k("s_mov_b64 exec, -1")
    k(f"s_mov_b32 {sit}, {spin}")
    if pipeB:
        k("s_waitcnt vmcnt(0)")
        bmask(); breload()
        if pipeB > 1: k(f"s_sleep {pipeB - 1}")
        k("L_hopB:")
        breload()
        k(f"s_waitcnt vmcnt({NH})")
        bmask()
    else:
        k("L_hopB:\ns_waitcnt vmcnt(0)")
        bmask()
        delay(slB)
        breload()
    k(f"""s_sub_u32 {sit}, {sit}, 1
    s_cmp_lg_u32 {sit}, 0
    s_cbranch_scc1 L_hopB
    s_waitcnt vmcnt(0)
    L_hopB_done:""")
    st(5)
    k("s_waitcnt lgkmcnt(0)")
    if n32:
        for s in range(NH):
            for nt in range(2):
                a = G + 8*(s&1) + 4*nt
                k(f"v_mfma_f32_16x16x32_bf16 {r4(a)}, {r4(WD+8*s+4*nt)}, {r4(HF+4*s)}, {'0' if s < 2 else r4(a)}")
        k("s_nop 6")
        for nt in range(2):
            a = G + 4*nt
            for r in range(4): k(f"v_add_f32 v{a+r}, v{a+r}, v{a+8+r}")
            for r in range(4): k(f"v_and_or_b32 v{a+r}, v{a+r}, {sNM}, {vT}")
            k(f"buffer_store_dwordx4 {r4(a)}, {vCs}, {sW}, {sCst} offen offset:{512*nt}{stC}")
    else:
        for s in range(7):
            for nt in range(4):
                a = ACC2 + 4*nt
                k(f"v_mfma_f32_16x16x32_bf16 {r4(a)}, {r4(WD+16*s+4*nt)}, {r4(HF+4*s)}, {'0' if s == 0 else r4(a)}")
        k("s_nop 4")
        for nt in range(4):
            a = ACC2 + 4*nt
            if nt == 3: k("s_nop 1")
            for r in range(4): k(f"v_and_or_b32 v{a+r}, v{a+r}, {sNM}, {vT}")
            k(f"buffer_store_dwordx4 {r4(a)}, {vCs}, {sW}, {sCst} offen offset:{256*nt} sc1")
    st(6)
    delay(dC)
    k(f"s_mov_b32 {sit}, {spin}")
    def cloads(masked):
        for jj in range(NT):
            k(f"s_add_u32 {t0}, {sCld}, {4096*jj}")
            if masked: k(f"s_mov_b64 exec, {MK[jj]}")
            k(f"buffer_load_dwordx4 {r4(PC+4*jj)}, {vCl}, {sW}, {t0} offen{ldC}")
        if masked: k("s_mov_b64 exec, -1")
    cloads(False)
    k("L_hopC:\ns_waitcnt vmcnt(0)")
    if mC:
        for j in range(NT): gcheck(PC + 4*j, MK[j])
        orall(NT)
        k("s_cbranch_scc0 L_hopC_done")
    else:
        tagcheck(PC, 4*NT)
        k("s_cbranch_vccz L_hopC_done")
    delay(slC)
    cloads(mC)
    k(f"""s_sub_u32 {sit}, {sit}, 1
    s_cmp_lg_u32 {sit}, 0
    s_cbranch_scc1 L_hopC
    s_waitcnt vmcnt(0)
    L_hopC_done:""")
    st(7)
    for r in range(4):
        k(f"v_add_f32 v{PC+r}, v{PC+r}, v{PC+4+r}")
        if not n32: k(f"v_add_f32 v{PC+8+r}, v{PC+8+r}, v{PC+12+r}")
    if not n32:
        for r in range(4): k(f"v_add_f32 v{PC+r}, v{PC+r}, v{PC+8+r}")
    k(f"""s_nop 1
    v_permlane32_swap_b32 v{PC}, v{PC+2}
    v_permlane32_swap_b32 v{PC+1}, v{PC+3}
    s_nop 1
    v_add_f32 v{PC}, v{PC}, v{PC+2}
    v_add_f32 v{PC+1}, v{PC+1}, v{PC+3}
    s_nop 1
    v_permlane16_swap_b32 v{PC}, v{PC+1}
    s_nop 1
    v_add_f32 v{PC}, v{PC}, v{PC+1}
    v_cvt_pk_bf16_f32 v{PC}, v{PC}, v{PC}
    buffer_store_short v{PC}, {vO}, {sO}, 0 offen""")
    if stamps or pace:
        k("s_waitcnt vmcnt(0)")
        st(8)
    if stamps:
        k("L_tail:")
        k(f"s_cmp_eq_u32 {sMode}, 0\ns_cbranch_scc1 L_nm\ns_atomic_add {sMode}, {sDb}, 0\nL_nm:")
        k.store_stamps(0, tmpv=28)
    k("L_end:\ns_endpgm")
    if d5:
        k(f"L_d5:\ns_cmp_ge_u32 {sr}, 28\ns_cbranch_scc1 L_d5e\nv_subrev_u32 {vDs}, {64*2048}, {vDs}")
        done = []
        for j in list(range(8)) + ["A"]:
            if j == "A":
                if d5sl: k(f"s_sleep {d5sl}")
            else: k("s_barrier")
            for c in d5.get(j, []):
                done.append(c)
                for w in range(4):
                    k(f"s_mov_b32 m0, {L_D + 4096*c + 1024*w}\ns_mov_b32 {sOd}, {(64*c + 16*w)*2048}")
                    k(f"buffer_load_dwordx4 {vDs}, {sD}, {sOd} offen{NTD} lds")
        assert sorted(done) == list(range(7))
        k("s_waitcnt vmcnt(0)\ns_barrier\nL_d5e:\ns_waitcnt vmcnt(0) lgkmcnt(0)\ns_endpgm")
    if wb:
        k(f"""L_wb:
        s_cmp_lg_u32 {sr}, {wb}
        s_cbranch_scc1 L_wbe
        {chr(10).join(["s_barrier"] * wbbar)}
        {f"s_sleep {wbsl}" if wbsl else ""}
        buffer_wbl2 sc1
        {"s_waitcnt vmcnt(0)" if wbw else ""}
        L_wbe:
        s_endpgm""")
    return k
```

```python
import sys
sys.path.insert(0,"gen")
from gen5 import *
S6={4:"", 5:"", 6:"D0 D1", 7:"D2 D3", "A1":"D4 D5 D6"}
def S(**kw):
    d=dict(S6)
    for a,b in kw.items(): d[int(a[1:]) if a[0]=="s" else a]=b
    return d
B=dict(wsoff=240<<20,dC=8,rotb=0,sched=S6,de=0,ipf=7,spW=(4,2),spWe=True)
V = {
 "m0": dict(B),
 "m1": dict(B, spX=True),
 "m2": dict(B, spW2=7),
 "m3": dict(B, spW2=7, spW2e=True),
 "m4": dict(B, spX=True, spW2=7),
 "m5": dict(B, sched=S(init="W0 X0 W1 X1 W2 X2",s0="W3 X3",s1="W4 X4",s2="W5 X5",s3="W6 X6",s4="W7 X7")),
 "m6": dict(B, sched=S(init="W0 X0 W1 X1 W2 X2 W3 X3 W4 X4",s0="W5 X5",s1="W6 X6",s2="W7 X7",s3="")),
 "m7": dict(B, slA=2, slB=2),
 "m8": dict(B, ntw=True, spX=True),
 "m9": dict(B, stA=" sc1"),
}
if __name__ == "__main__":
  for n, kw in V.items():
    assemble([gen(stamps=True, **kw)], f"x_{n}.s")
  print(" ".join("x_"+n for n in V)); print(",".join(f'"bench/x_{n}.co"' for n in V))
```
